```python
import torch

def _softmax(x, axis=-1):
    return torch.softmax(x, dim=axis)

def _gelu(x):
    return torch.nn.functional.gelu(x, approximate='tanh')

def _silu(x):
    return torch.nn.functional.silu(x)

def _sigmoid(x):
    return torch.sigmoid(x)

def _layernorm(x, axis=-1, eps=1e-05):
    m = x.mean(dim=axis, keepdim=True)
    v = x.var(dim=axis, keepdim=True, unbiased=False)
    return (x - m) / torch.sqrt(v + eps)

def _scatter_add(tgt, idx, src, axis=0):
    return tgt.clone().index_add_(axis, idx, src)

def _segment_sum(src, seg, n):
    out = torch.zeros((n,) + src.shape[1:], dtype=src.dtype)
    return out.index_add_(0, seg, src)

def _pad(x, pw):
    flat = tuple((v for pair in reversed(pw) for v in pair))
    return torch.nn.functional.pad(x, flat)
kernel_name = 'adaLN_cond__gqa_block_cached__mixer_token_mlp__decode'

def setup_inputs():

    _w = lambda a: (lambda t: t.to(torch.bfloat16) if t.is_floating_point() else t)(torch.as_tensor(a))

    def _A_setup():
        B, Sq, D = (2, 1, 1024)
        Hq, Hkv, Sk, Dh = (32, 4, 32768, 128)
        assert Hq % Hkv == 0, (Hq, Hkv)
        return {'x': _w((lambda *s: torch.randn(*s, dtype=torch.bfloat16) * 0.05)(B, Sq, D)), 'k_cache': _w((lambda *s: torch.randn(*s, dtype=torch.bfloat16) * 3.2)(B, Hkv, Sk, Dh)), 'v_cache': _w((lambda *s: torch.randn(*s, dtype=torch.bfloat16) * 1.6)(B, Hkv, Sk, Dh)), 'wq': _w((lambda *s: torch.randn(*s, dtype=torch.bfloat16) * 3.2)(D, Hq * Dh) * D ** (-0.5)), 'wo': _w((lambda *s: torch.randn(*s, dtype=torch.bfloat16) * 1.6)(Hq * Dh, D) * (Hq * Dh) ** (-0.5))}
    _A_in = _A_setup()

    def _B_setup():
        B, S, D, F = (2, 1, 1024, 3584)
        return {'x': _w((lambda *s: torch.randn(*s, dtype=torch.bfloat16) * 0.05)(B, S, D)), 'w1': _w((lambda *s: torch.randn(*s, dtype=torch.bfloat16) * 1.6)(S, F) * S ** (-0.5)), 'b1': _w((lambda *s: torch.randn(*s, dtype=torch.bfloat16) * 1.6)(F) * 0.02), 'w2': _w((lambda *s: torch.randn(*s, dtype=torch.bfloat16) * 1.6)(F, S) * F ** (-0.5)), 'b2': _w((lambda *s: torch.randn(*s, dtype=torch.bfloat16) * 1.6)(S) * 0.02)}
    _B_in = _B_setup()
    return {'A_x': _A_in['x'], 'A_k_cache': _A_in['k_cache'], 'A_v_cache': _A_in['v_cache'], 'A_wq': _A_in['wq'], 'A_wo': _A_in['wo'], 'B_x': _B_in['x'], 'B_w1': _B_in['w1'], 'B_b1': _B_in['b1'], 'B_w2': _B_in['w2'], 'B_b2': _B_in['b2'], 'c': _w((lambda *s: torch.randn(*s, dtype=torch.bfloat16) * 0.05)(2, 1024) * 8.0), 'w_mod': _w((lambda *s: torch.randn(*s, dtype=torch.bfloat16) * 0.05)(1024, 6 * 1024) * 1024 ** (-0.5) * 8.0)}

def reference(A_x, A_k_cache, A_v_cache, A_wq, A_wo, B_x, B_w1, B_b1, B_w2, B_b2, c, w_mod):

    def _A_ref(x, k_cache, v_cache, wq, wo):
        B, Sq, D = x.shape
        Hq, Dh = (32, 128)
        Hkv = k_cache.shape[1]
        rep = Hq // Hkv
        q = (lambda x, *d: x.permute(*d))((x @ wq).reshape(B, Sq, Hq, Dh), 0, 2, 1, 3)
        k = (lambda x, n, axis: torch.repeat_interleave(x, n, dim=axis))(k_cache, rep, axis=1)
        v = (lambda x, n, axis: torch.repeat_interleave(x, n, dim=axis))(v_cache, rep, axis=1)
        scores = torch.einsum('bhqd,bhkd->bhqk', q, k) * Dh ** (-0.5)
        p = _softmax(scores, axis=-1)
        o = torch.einsum('bhqk,bhkd->bhqd', p, v)
        return (lambda x, *d: x.permute(*d))(o, 0, 2, 1, 3).reshape(B, Sq, Hq * Dh) @ wo

    def _B_ref(x, w1, b1, w2, b2):
        B, S, D = x.shape
        h = _layernorm(x, axis=-1)
        u = torch.einsum('bsd,sf->bdf', h, w1) + b1
        u = _gelu(u)
        y = torch.einsum('bdf,fs->bds', u, w2) + b2
        return (lambda x, *d: x.permute(*d))(y, 0, 2, 1)
    x = A_x
    mod = (_silu(c) @ w_mod).reshape(c.shape[0], 6, 1, -1)
    sa, ca, ga, sb, cb, gb = (mod[:, 0].clone(), mod[:, 1].clone(), mod[:, 2].clone(), mod[:, 3].clone(), mod[:, 4].clone(), mod[:, 5].clone())
    h = _layernorm(x, axis=-1) * (1 + ca) + sa
    x = x + ga * _A_ref(h, A_k_cache, A_v_cache, A_wq, A_wo)
    h = _layernorm(x, axis=-1) * (1 + cb) + sb
    x = x + gb * _B_ref(h, B_w1, B_b1, B_w2, B_b2)
    return x
```

```python
import re

TRANS = ('v_exp_f32', 'v_log_f32', 'v_rcp_f32', 'v_rsq_f32', 'v_sqrt_f32', 'v_sin_f32', 'v_cos_f32')

def regs_of(tok):
    tok = tok.strip()
    if tok.startswith('-'): tok = tok[1:]
    m = re.fullmatch(r'abs\((.*)\)|\|(.*)\|', tok)
    if m: tok = m.group(1) or m.group(2)
    m = re.fullmatch(r'([vsa])\[(\d+):(\d+)\]', tok)
    if m: return [f'{m.group(1)}{i}' for i in range(int(m.group(2)), int(m.group(3)) + 1)]
    if re.fullmatch(r'[vsa]\d+', tok): return [tok]
    if tok in ('vcc', 'vcc_lo', 'vcc_hi'): return ['vcc']
    if tok in ('exec', 'exec_lo', 'exec_hi'): return ['exec']
    if tok == 'm0': return ['m0']
    return []

class Ins:
    def __init__(self, text):
        self.text = text
        t = text.split(';')[0].strip()
        parts = t.split(None, 1)
        self.op = parts[0]
        rest = parts[1] if len(parts) > 1 else ''
        ops = []; cur = ''; depth = 0
        for ch in rest:
            if ch == '[': depth += 1
            if ch == ']': depth -= 1
            if ch == ',' and depth == 0: ops.append(cur.strip()); cur = ''
            else: cur += ch
        if cur.strip(): ops.append(cur.strip())
        mods = ''
        if ops:
            last = ops[-1].split(None, 1)
            ops[-1] = last[0]
            mods = last[1] if len(last) > 1 else ''
        self.ops = ops; self.mods = mods
        op = self.op
        self.mfma = op.startswith('v_mfma')
        self.valu = op.startswith('v_') and not self.mfma
        self.trans = any(op.startswith(x) for x in TRANS)
        self.dpp = bool(re.search(r'quad_perm|row_|wave_', mods))
        self.permlane = op.startswith('v_permlane')
        self.lane = op.startswith(('v_readlane', 'v_readfirstlane', 'v_writelane'))
        self.vmem = op.startswith(('buffer_', 'global_', 'flat_'))
        self.ds = op.startswith('ds_')
        self.branch = op.startswith(('s_cbranch', 's_branch', 's_setpc', 's_swappc', 's_endpgm', 's_call'))
        self.w = []; self.r = []
        R = [regs_of(o) for o in ops]
        flat = lambda l: [x for y in l for x in y]
        if self.mfma:
            self.w = R[0]; self.r = flat(R[1:]); self.A = R[1]; self.B = R[2]; self.C = R[3]
            self.passes = 8 if '32x32' in op else 4
        elif self.valu:
            if self.permlane and 'swap' in op:
                self.w = R[0] + R[1]; self.r = R[0] + R[1]
            elif re.match(r'v_(add|sub|subrev)_co_u32|v_(addc|subb)_co_u32|v_div_scale|v_mad_u64', op):
                self.w = R[0] + R[1]; self.r = flat(R[2:])
            else:
                self.w = R[0]; self.r = flat(R[1:])
                if op.startswith(('v_fmac', 'v_dot2c', 'v_pk_fmac', 'v_writelane')) or self.dpp: self.r += R[0]
                if op.startswith('v_cndmask') and len(ops) == 3: self.r += ['vcc']
        elif self.vmem:
            st = 'store' in op or ('atomic' in op and 'sc0' not in mods)
            if op in ('buffer_inv', 'buffer_wbl2'): pass
            elif st or ' lds' in (' ' + mods): self.r = flat(R)
            else: self.w = R[0]; self.r = flat(R[1:])
            self.wide_store = st and ('x4' in op or 'x3' in op)
            if self.wide_store:
                self.sdata = R[0] if op.startswith('buffer_') else R[1]
        elif self.ds:
            if re.match(r'ds_(read|bpermute|permute|swizzle)|ds_.*_rtn', op): self.w = R[0]; self.r = flat(R[1:])
            else: self.r = flat(R)
        elif op.startswith('s_'):
            if op.startswith(('s_cmp', 's_cbranch', 's_branch', 's_waitcnt', 's_nop', 's_barrier', 's_sleep', 's_setprio', 's_endpgm', 's_bitcmp')):
                self.r = flat(R)
            else:
                self.w = R[0] if R else []; self.r = flat(R[1:])
        self.states = 1
        if op == 's_nop': self.states = int(ops[0], 0) + 1

def need(p, c):
    n = 0
    pw = set(p.w); cr = set(c.r); cw = set(c.w)
    pv = {x for x in pw if x[0] in 'va' and x != 'vcc'}
    ps = {x for x in pw if x[0] == 's' or x == 'vcc'}
    if p.valu:
        if c.mfma and pv & cr: n = max(n, 2)
        if c.valu and c.dpp and pv & cr: n = max(n, 2)
        if c.permlane and pv & cr: n = max(n, 2)
        if c.lane and pv & cr: n = max(n, 1)
        if p.trans and (c.valu or c.mfma) and pv & (cr | cw): n = max(n, 1)
        if ps & cr:
            if c.valu: n = max(n, 4 if c.lane else 2)
            elif c.vmem: n = max(n, 5)
            else: n = max(n, 1)
        if 'exec' in pw: n = max(n, 5)
    if p.mfma:
        k = {4: (6, 8, 3), 8: (10, 12, 7)}[p.passes]
        if c.mfma:
            if pv & set(c.C):
                if not (c.C == p.w and c.passes == p.passes): n = max(n, k[0])
            if pv & (set(c.A) | set(c.B)): n = max(n, k[1])
            if pv & cw and not (c.C == p.w): n = max(n, k[1])
        elif c.valu or c.vmem or c.ds:
            if pv & (cr | cw): n = max(n, k[1])
        if c.valu and set(p.C) & cw: n = max(n, k[2])
    if p.vmem and getattr(p, 'wide_store', False):
        if set(p.sdata) & cw: n = max(n, 2)
    if 'm0' in pw and not p.valu and (c.vmem and ' lds' in (' ' + c.mods)): n = max(n, 1)
    return n

def worst(p):
    if p.mfma: return 12 if p.passes == 8 else 8
    if p.valu:
        if any(x[0] == 's' or x in ('vcc', 'exec') for x in p.w): return 5
        return 2
    if p.vmem and getattr(p, 'wide_store', False): return 2
    return 0

class Asm:
    def __init__(self):
        self.out = []; self.hist = []
        self.nlab = 0
    def raw(self, s): self.out.append(s)
    def label(self, name): self.out.append(f'{name}:')
    def newlabel(self, base='L'):
        self.nlab += 1; return f'{base}_{self.nlab}'
    def _nop(self, n):
        while n > 0:
            k = min(n, 16); i = Ins(f's_nop {k-1}'); self.out.append(f'    s_nop {k-1}'); self.hist.append(i); n -= k
    def __call__(self, text):
        for line in text.split('\n'):
            line = line.strip()
            if not line or line.startswith(';'): continue
            c = Ins(line)
            dist = 0; req = 0
            for p in reversed(self.hist[-24:]):
                nn = worst(p) if c.branch and not c.op.startswith('s_endpgm') else need(p, c)
                if c.branch: nn -= 1
                req = max(req, nn - dist)
                dist += p.states
                if dist > 20: break
            if req > 0: self._nop(req)
            self.out.append('    ' + line); self.hist.append(c)
    def text(self): return '\n'.join(self.out) + '\n'
```

```python
import sys, struct
from asmlib import Asm
KN = 'adaLN_cond__gqa_block_cached__mixer_token_mlp__decode_kernel'

def f2u(x): return struct.unpack('<I', struct.pack('<f', x))[0]
def hx(x): return '0x%08x' % (x & 0xffffffff)
LOG2E = 1.4426950408889634

MODP = 0x10000; QP = 0x100000; ST = 0x140000; FIN = 0x150000; X1 = 0x158000; AP = 0x180000; OP = 0x200000
WS_USED = 0x300000
STAMP_OFF = 200 << 20
LQ = 0; LST = 2048; LF = 2560; LCNT = 2816; LRED = 3072; LOWN = 7168; LH2 = 7424; LMLP = 7680; LO = 8192
LDS_BYTES = 40960
POLL_LIMIT = 200000

def v(a, n=1): return f'v{a}' if n == 1 else f'v[{a}:{a+n-1}]'

def gen(stamps=False, D1=4, D2=8):
    A = Asm()
    A.raw(f'; @launch grid=(256,1,1) block=(768,1,1) lds={LDS_BYTES}')
    A.raw('.amdgcn_target "amdgcn-amd-amdhsa--gfx950"')
    A.raw('.text'); A.raw(f'.globl {KN}'); A.raw('.p2align 8'); A.raw(f'.type {KN},@function'); A.raw(f'{KN}:')
    def stamp(i):
        if stamps: A(f's_memrealtime s[{70+2*i}:{71+2*i}]')
    def stamp_flush(n):
        if not stamps: return
        A('s_waitcnt lgkmcnt(0) vmcnt(0)')
        A('s_mov_b64 exec, 1')
        A(f's_mul_i32 s4, s2, 12\ns_add_u32 s4, s4, s3\ns_lshl_b32 s4, s4, 7\ns_add_u32 s4, s4, {STAMP_OFF}')
        A('v_mov_b32 v1, s4')
        for i in range(n):
            A(f'v_mov_b32 v2, s{70+2*i}\nv_mov_b32 v3, s{71+2*i}')
            A(f'global_store_dwordx2 v1, v[2:3], s[42:43] offset:{8*i}')
            A('s_nop 1')
    def rnd2(a, b, tmp):
        A(f'v_cvt_pk_bf16_f32 v{tmp}, v{a}, v{b}')
        A(f'v_lshlrev_b32 v{a}, 16, v{tmp}')
        A(f'v_and_b32 v{b}, 0xffff0000, v{tmp}')
    def rnd1(a):
        A(f'v_cvt_pk_bf16_f32 v{a}, v{a}, v{a}')
        A(f'v_and_b32 v{a}, 0xffff0000, v{a}')
    def dpp(op, d, a, ctl):
        A(f'{op}_dpp v{d}, v{a}, v{d} {ctl} row_mask:0xf bank_mask:0xf')
    X1_ = 'quad_perm:[1,0,3,2]'; X2_ = 'quad_perm:[2,3,0,1]'; HM = 'row_half_mirror'; RM = 'row_mirror'; R8 = 'row_ror:8'
    def red(op, regs, steps, tmp):
        for s in steps:
            if s in ('p16', 'p32'):
                for r, t in zip(regs, tmp): A(f'v_mov_b32 v{t}, v{r}')
                for r, t in zip(regs, tmp): A(f'v_permlane{s[1:]}_swap_b32 v{r}, v{t}')
                for r, t in zip(regs, tmp): A(f'{op} v{r}, v{r}, v{t}')
            else:
                for r in regs: dpp(op, r, r, s)
    def embed(dst, srcs, vff):
        for k, s in enumerate(srcs): A(f'v_add_u32 v{dst+k}, 0x80, v{s}')
        for k in range(4): A(f'v_bfi_b32 v{dst+k}, v{vff}, s{56+k}, v{dst+k}')
    def gather(dst, n, vaddr, offs, tmp):
        L = A.newlabel('Lpoll'); E = A.newlabel('Lpend')
        A(f's_mov_b32 s10, {POLL_LIMIT}')
        A.label(L)
        for i in range(n):
            o = offs[i]; so = o & ~0xfff; io = o & 0xfff
            if so:
                A(f's_mov_b32 s11, {so}')
                A(f'buffer_load_dwordx4 {v(dst+4*i,4)}, v{vaddr}, s[44:47], s11 offen offset:{io} sc1')
            else:
                A(f'buffer_load_dwordx4 {v(dst+4*i,4)}, v{vaddr}, s[44:47], 0 offen offset:{io} sc1')
        for i in range(n):
            A(f's_waitcnt vmcnt({n-1-i})')
            for k in range(4): A(f'v_xor_b32 v{dst+4*i+k}, s{56+k}, v{dst+4*i+k}')
            if i == 0:
                A(f'v_or_b32 v{tmp}, v{dst}, v{dst+1}')
            else:
                A(f'v_or3_b32 v{tmp}, v{tmp}, v{dst+4*i}, v{dst+4*i+1}')
            A(f'v_or3_b32 v{tmp}, v{tmp}, v{dst+4*i+2}, v{dst+4*i+3}')
        A(f'v_and_b32 v{tmp}, 0xff, v{tmp}')
        A(f'v_cmp_ne_u32 vcc, 0, v{tmp}')
        A('s_sub_u32 s10, s10, 1')
        A(f's_cbranch_scc1 {E}')
        A('s_mov_b64 exec, vcc')
        A(f's_cbranch_execnz {L}')
        A.label(E)
        A('s_mov_b64 exec, -1')
    def tile_loads(dst, vaddr, srd, stride, row0=0):
        for i in range(8):
            o = (row0 + i) * stride
            if o:
                A(f's_mov_b32 s11, {o}')
                A(f'buffer_load_dwordx4 {v(dst+4*i,4)}, v{vaddr}, {srd}, s11 offen nt')
            else:
                A(f'buffer_load_dwordx4 {v(dst+4*i,4)}, v{vaddr}, {srd}, 0 offen nt')
    def perm_pair(f0, f1, raw, t):
        for b in range(4):
            X = raw + 8 * b + t; Y = raw + 8 * b + 4 + t
            A(f'v_perm_b32 v{f0+b}, v{Y}, v{X}, s12')
            A(f'v_perm_b32 v{f1+b}, v{Y}, v{X}, s13')
    def mfma(acc, a, b, first):
        A(f'v_mfma_f32_16x16x32_bf16 {v(acc,4)}, {v(a,4)}, {v(b,4)}, {"0" if first else v(acc,4)}')
    def select_out(dst, acc):
        for k in range(4):
            A(f'v_cndmask_b32 v{dst+k}, v{acc+4*k}, v{acc+16+4*k}, s[14:15]')

    A('s_cmp_ge_u32 s2, 256\ns_cbranch_scc1 L_end')
    stamp(0)
    A('s_load_dwordx16 s[16:31], s[0:1], 0')
    A('s_load_dwordx8 s[32:39], s[0:1], 64')
    A('s_load_dwordx2 s[40:41], s[0:1], 96')
    A('s_load_dwordx2 s[42:43], s[0:1], 112')
    A('v_lshrrev_b32 v1, 6, v0')
    A('v_and_b32 v0, 63, v0')
    A('v_readfirstlane_b32 s3, v1')
    A('s_mov_b32 s12, 0x05040100\ns_mov_b32 s13, 0x07060302')
    A('s_cmp_lt_u32 s3, 4')
    A('s_cbranch_scc1 L_ctrl')

    KB = 40
    QF = 4; CT = 12; S = 20; T = 36; OA = 136
    A('v_lshrrev_b32 v4, 1, v0\nv_and_b32 v4, 1, v4\nv_lshlrev_b32 v4, 10, v4')
    A('v_lshrrev_b32 v5, 2, v0\nv_and_b32 v5, 3, v5\nv_lshlrev_b32 v5, 8, v5')
    A('v_lshrrev_b32 v6, 4, v0\nv_lshlrev_b32 v6, 5, v6')
    A('v_and_b32 v7, 1, v0\nv_lshlrev_b32 v8, 4, v7')
    A('v_add3_u32 v1, v4, v5, v6\nv_add_u32 v1, v1, v8')
    A('v_lshlrev_b32 v2, 4, v0')
    A('s_and_b32 s4, s2, 7\ns_lshl_b32 s4, s4, 23\ns_lshr_b32 s5, s2, 3\ns_lshl_b32 s5, s5, 18\ns_add_u32 s4, s4, s5')
    A('s_sub_u32 s6, s3, 4\ns_lshl_b32 s5, s6, 12\ns_add_u32 s4, s4, s5')
    A(f's_sub_u32 s5, {64<<20}, s4')
    A('s_waitcnt lgkmcnt(0)')
    A('s_add_u32 s48, s18, s4\ns_addc_u32 s49, s19, 0\ns_mov_b32 s50, s5\ns_mov_b32 s51, 0x20000')
    A('s_add_u32 s52, s20, s4\ns_addc_u32 s53, s21, 0\ns_mov_b32 s54, s5\ns_mov_b32 s55, 0x20000')
    issued = [0]
    def wait_load(k):
        n = issued[0] - 1 - k
        A(f's_waitcnt vmcnt({max(n,0)})')
    def kload(n, depth):
        if issued[0] >= depth: A(f's_waitcnt vmcnt({depth-1})')
        t = n // 4; j = n % 4
        so = '0'
        if t:
            so = 's11'
            if j == 0: A(f's_mov_b32 s11, {t*32768}')
        A(f'buffer_load_dwordx4 {v(KB+4*n,4)}, v1, s[48:51], {so} offen offset:{(j>>1)*2048+(j&1)*128} nt')
        issued[0] += 1
    def vslot(n): return KB + 4 * (n % 24)
    def vload(n, depth):
        if depth: A(f's_waitcnt vmcnt({depth-1})')
        t = n // 4; j = n % 4
        so = '0'
        if t:
            so = 's11'
            A(f's_mov_b32 s11, {t*32768}')
        A(f'buffer_load_dwordx4 {v(vslot(n),4)}, v2, s[52:55], {so} offen offset:{j*1024} nt')
        issued[0] += 1
    for n in range(D1): kload(n, D1)
    A('s_barrier')
    A('v_cmp_eq_u32 vcc, 1, v7\nv_mov_b32 v3, 0xffff\nv_mov_b32 v9, 0xffff0000\nv_cndmask_b32 v3, v3, v9, vcc')
    A('s_mov_b32 s14, 0xaaaaaaaa\ns_mov_b32 s15, 0xaaaaaaaa')
    A('v_and_b32 v9, 14, v0\nv_lshlrev_b32 v9, 7, v9\nv_add3_u32 v39, v9, v6, v8')
    for n in range(D1, 32): kload(n, D1)
    stamp(1)
    A('s_barrier')
    stamp(2)
    A(f'ds_read_b128 {v(QF,4)}, v39 offset:{LQ}')
    A(f'ds_read_b128 {v(QF+4,4)}, v39 offset:{LQ+128}')
    A('s_waitcnt lgkmcnt(0)')
    def qk_mfma(b):
        c = CT + 4 * (b & 1)
        mfma(c, KB + 8 * b, QF, True)
        mfma(c, KB + 8 * b + 4, QF + 4, False)
    def qk_fin(b):
        c = CT + 4 * (b & 1)
        A(f'v_cndmask_b32 v{T}, v{c+2}, v{c+1}, s[14:15]')
        A(f'v_cndmask_b32 v{S+b}, v{c}, v{c+3}, s[14:15]')
        o = T + 1 if False else T
        A(f'v_add_f32_dpp v{S+b}, v{T}, v{S+b} {X1_} row_mask:0xf bank_mask:0xf')
    nv = 0
    done_k = 32 - D1 - 1
    for b in range(16):
        if 2 * b + 1 > 31 - D1: wait_load(2 * b + 1)
        qk_mfma(b)
        if b >= 1: qk_fin(b - 1)
        if b in (1, 3, 5, 7) and nv < D2 - D1:
            vload(nv, 0); nv += 1
        if b >= 12:
            vload(nv, D2); nv += 1
    qk_fin(15)
    A(f's_mov_b32 s4, {hx(f2u(128 ** -0.5))}')
    for i in range(0, 16, 2):
        rnd2(S + i, S + i + 1, T + (i // 2) % 2)
        A(f'v_mul_f32 v{S+i}, s4, v{S+i}\nv_mul_f32 v{S+i+1}, s4, v{S+i+1}')
        rnd2(S + i, S + i + 1, T + 2 + (i // 2) % 2)
    M = 12; Lr = 13
    A(f'v_max3_f32 v{M}, v{S}, v{S+1}, v{S+2}')
    for i in range(3, 15, 2): A(f'v_max3_f32 v{M}, v{M}, v{S+i}, v{S+i+1}')
    A(f'v_max_f32 v{M}, v{M}, v{S+15}')
    red('v_max_f32', [M], [X1_, 'p16', 'p32'], [T])
    vload(nv, D2); nv += 1
    A(f's_mov_b32 s4, {hx(f2u(LOG2E))}')
    A(f'v_mul_f32 v14, s4, v{M}')
    for i in range(16): A(f'v_fma_f32 v{S+i}, v{S+i}, s4, -v14')
    for i in range(16): A(f'v_exp_f32 v{S+i}, v{S+i}')
    A(f'v_add_f32 v{Lr}, v{S}, v{S+1}')
    for i in range(2, 16): A(f'v_add_f32 v{Lr}, v{Lr}, v{S+i}')
    for i in range(16):
        A(f'v_cvt_pk_bf16_f32 v{S+i}, v{S+i}, v{S+i}')
    for i in range(16):
        A(f'v_and_b32 v{S+i}, v3, v{S+i}')
    red('v_add_f32', [Lr], [X1_, 'p16', 'p32'], [T])
    A('s_lshl_b32 s4, s6, 6\nv_lshlrev_b32 v14, 2, v0\nv_add_u32 v14, s4, v14')
    A('s_mov_b64 exec, 0x5555')
    A(f'ds_write_b64 v14, v[{M}:{Lr}] offset:{LST}')
    A('s_mov_b64 exec, -1')
    vload(nv, D2); nv += 1
    A('s_waitcnt lgkmcnt(0)')
    stamp(3)
    A('s_barrier')
    PT = 4
    for tau in range(4):
        while nv < 8 * tau + 8: vload(nv, D2); nv += 1
        raw = vslot(8 * tau)
        if tau < 3:
            lim = min(32, 8 * tau + 24)
            while nv < lim and (issued[0] - 1 - (32 + 8 * tau + 7)) < D2 - 1:
                vload(nv, D2); nv += 1
            wait_load(32 + 8 * tau + 7)
            for t in range(4):
                f0 = PT + 8 * (t & 1); f1 = f0 + 4
                perm_pair(f0, f1, raw, t)
                mfma(OA + 8 * t, S + 4 * tau, f0, tau == 0)
                mfma(OA + 8 * t + 4, S + 4 * tau, f1, tau == 0)
        else:
            FB = vslot(8)
            for b in range(4):
                wait_load(32 + 24 + 2 * b + 1)
                for t in range(4):
                    X = raw + 8 * b + t; Y = X + 4
                    A(f'v_perm_b32 v{FB+8*t+b}, v{Y}, v{X}, s12')
                    A(f'v_perm_b32 v{FB+8*t+4+b}, v{Y}, v{X}, s13')
            for n in range(8): mfma(OA + 4 * n, S + 12, FB + 4 * n, False)
    stamp(4)
    A('v_lshrrev_b32 v4, 4, v0\nv_lshlrev_b32 v4, 10, v4\nv_and_b32 v5, 15, v0\nv_lshlrev_b32 v5, 4, v5')
    A('s_lshl_b32 s4, s6, 12\nv_add3_u32 v4, v4, v5, s4')
    W = 40
    for n in range(8):
        A(f'v_add_f32 v{W+n}, v{OA+4*n}, v{OA+4*n+1}')
        A(f'v_add_f32 v{W+8+n}, v{OA+4*n+2}, v{OA+4*n+3}')
    A(f'ds_write_b128 v4, {v(W,4)} offset:{LO}')
    A(f'ds_write_b128 v4, {v(W+4,4)} offset:{LO+256}')
    A(f'ds_write_b128 v4, {v(W+8,4)} offset:{LO+512}')
    A(f'ds_write_b128 v4, {v(W+12,4)} offset:{LO+768}')
    A('s_waitcnt lgkmcnt(0)')
    A('s_barrier')
    stamp(5)
    A('s_mul_i32 s4, s6, 896\nv_lshlrev_b32 v4, 1, v0\nv_add_u32 v4, s4, v4')
    W1 = 60; B1 = 68; W2 = 76; BW = 84
    for i in range(7):
        A(f'global_load_ushort v{W1+i}, v4, s[28:29] offset:{128*i}')
        A(f'global_load_ushort v{B1+i}, v4, s[30:31] offset:{128*i}')
        A(f'global_load_ushort v{W2+i}, v4, s[32:33] offset:{128*i}')
    A('s_waitcnt vmcnt(0)')
    for i in range(7):
        A(f'v_lshlrev_b32 v{W1+i}, 16, v{W1+i}\nv_lshlrev_b32 v{B1+i}, 16, v{B1+i}\nv_lshlrev_b32 v{W2+i}, 16, v{W2+i}')
        A(f'v_mul_f32 v{BW+i}, v{B1+i}, v{W2+i}\nv_mul_f32 v{W2+i}, v{W1+i}, v{W2+i}')
    A('s_barrier')
    A('s_barrier')
    stamp(6)
    A(f'v_mov_b32 v4, 0\nds_read_b128 v[8:11], v4 offset:{LH2}\nds_read_b128 v[12:15], v4 offset:{LH2+16}')
    ca = -2.0 * 0.7978845608028654 * LOG2E
    A(f's_mov_b32 s4, {hx(f2u(ca))}\nv_mov_b32 v5, {hx(f2u(ca*0.044715))}')
    A('s_waitcnt lgkmcnt(0)')
    ACC = 20; U = 30; E = 40; G = 50
    for o in range(8):
        t = 8 + o
        for i in range(7): A(f'v_fma_f32 v{U+i}, v{t}, v{W1+i}, v{B1+i}')
        for i in range(7): A(f'v_mul_f32 v{E+i}, v{U+i}, v{U+i}')
        for i in range(7): A(f'v_fma_f32 v{E+i}, v{E+i}, v5, s4')
        for i in range(7): A(f'v_mul_f32 v{E+i}, v{E+i}, v{U+i}')
        for i in range(7): A(f'v_exp_f32 v{E+i}, v{E+i}')
        for i in range(7): A(f'v_fma_f32 v{G+i}, v{t}, v{W2+i}, v{BW+i}')
        for i in range(7): A(f'v_add_f32 v{E+i}, 1.0, v{E+i}')
        for i in range(7): A(f'v_rcp_f32 v{E+i}, v{E+i}')
        A(f'v_mul_f32 v{ACC+o}, v{G}, v{E}')
        for i in range(1, 7): A(f'v_fmac_f32 v{ACC+o}, v{G+i}, v{E+i}')
    red('v_add_f32', list(range(ACC, ACC + 8)), [X1_, X2_, HM, RM, 'p16', 'p32'], list(range(U, U + 8)))
    A('s_lshl_b32 s4, s6, 5\nv_mov_b32 v4, s4')
    A('s_mov_b64 exec, 1')
    A(f'ds_write_b128 v4, {v(ACC,4)} offset:{LMLP}\nds_write_b128 v4, {v(ACC+4,4)} offset:{LMLP+16}')
    A('s_mov_b64 exec, -1')
    A('s_waitcnt lgkmcnt(0)')
    A('s_barrier')
    stamp(7)
    stamp_flush(8)
    A('s_endpgm')

    A.label('L_ctrl')
    A('s_setprio 2')
    HI = 1; LOr = 2; VFF = 3
    A('v_lshrrev_b32 v1, 4, v0\nv_and_b32 v2, 15, v0\nv_mov_b32 v3, 0xff')
    A('s_mov_b32 s14, 0\ns_mov_b32 s15, -1')
    A('s_waitcnt lgkmcnt(0)')
    A('s_load_dword s60, s[42:43], 0')
    A(f's_mov_b32 s44, s42\ns_mov_b32 s45, s43\ns_mov_b32 s46, {WS_USED}\ns_mov_b32 s47, 0x20000')
    A(f's_mov_b32 s48, s38\ns_mov_b32 s49, s39\ns_mov_b32 s50, {12<<20}\ns_mov_b32 s51, 0x20000')
    A(f's_mov_b32 s52, s22\ns_mov_b32 s53, s23\ns_mov_b32 s54, {8<<20}\ns_mov_b32 s55, 0x20000')
    MR = 104; CF = 4; AC = 72; PTc = 24; W2R = 40
    def mod_issue():
        A('s_and_b32 s7, s2, 15\ns_lshr_b32 s8, s2, 4')
        A(f'v_mul_u32_u24 v12, {8*12288}, v{HI}')
        A(f'v_and_b32 v13, 7, v{LOr}\nv_lshlrev_b32 v13, 4, v13\nv_lshrrev_b32 v14, 3, v{LOr}\nv_lshlrev_b32 v14, 11, v14')
        A('v_add3_u32 v12, v12, v13, v14')
        A(f's_mul_i32 s4, s8, {64*12288}\ns_lshl_b32 s9, s5, 12\ns_add_u32 s4, s4, s9\ns_lshl_b32 s9, s7, 7\ns_add_u32 s4, s4, s9')
        A('v_add_u32 v12, s4, v12')
        A(f'v_lshrrev_b32 v13, 2, v{LOr}\nv_and_b32 v13, 1, v13\nv_lshlrev_b32 v13, 11, v13\nv_lshlrev_b32 v14, 4, v{HI}')
        A('s_lshl_b32 s9, s8, 7\nv_add3_u32 v13, v13, v14, s9')
        A(f'global_load_dwordx4 {v(CF,4)}, v13, s[36:37]')
        A(f'global_load_dwordx4 {v(CF+4,4)}, v13, s[36:37] offset:64')
        tile_loads(MR, 12, 's[48:51]', 12288, 0)
        tile_loads(MR + 32, 12, 's[48:51]', 12288, 32)
    def mod_compute(younger):
        A(f's_waitcnt vmcnt({younger+16})')
        A(f's_mov_b32 s4, {hx(f2u(-LOG2E))}')
        for r in range(8):
            a = PTc + 2 * r; b = a + 1
            A(f'v_lshlrev_b32 v{a}, 16, v{CF+r}\nv_and_b32 v{b}, 0xffff0000, v{CF+r}')
        for r in range(16): A(f'v_mul_f32 v{AC+r}, s4, v{PTc+r}')
        for r in range(16): A(f'v_exp_f32 v{AC+r}, v{AC+r}')
        for r in range(16): A(f'v_add_f32 v{AC+r}, 1.0, v{AC+r}')
        for r in range(16): A(f'v_rcp_f32 v{AC+r}, v{AC+r}')
        for r in range(16): A(f'v_mul_f32 v{AC+r}, v{AC+r}, v{PTc+r}')
        for r in range(8): A(f'v_cvt_pk_bf16_f32 v{CF+r}, v{AC+2*r}, v{AC+2*r+1}')
        for s in range(2):
            A(f's_waitcnt vmcnt({younger + 8*(1-s)})')
            for t in range(4):
                f0 = PTc + 8 * (t & 1); f1 = f0 + 4
                perm_pair(f0, f1, MR + 32 * s, t)
                mfma(AC + 8 * t, CF + 4 * s, f0, s == 0)
                mfma(AC + 8 * t + 4, CF + 4 * s, f1, s == 0)
        A('s_lshl_b32 s4, s5, 4\ns_add_u32 s4, s4, s7\ns_lshl_b32 s4, s4, 4\ns_add_u32 s4, s4, s8\ns_lshl_b32 s4, s4, 10')
        A(f's_add_u32 s4, s4, {MODP}')
        A('v_add_u32 v12, s4, v16')
        select_out(PTc, AC)
        embed(PTc + 4, range(PTc, PTc + 4), VFF)
        A(f'buffer_store_dwordx4 {v(PTc+4,4)}, v12, s[44:47], 0 offen sc1')
    A(f'v_and_b32 v12, 1, v{HI}\nv_lshlrev_b32 v12, 9, v12\nv_lshlrev_b32 v13, 5, v{LOr}\nv_lshrrev_b32 v14, 1, v{HI}\nv_lshlrev_b32 v14, 4, v14')
    A('v_add3_u32 v16, v12, v13, v14')
    A('v_add_u32 v17, v13, v14')
    A('s_cmp_lg_u32 s3, 0\ns_cbranch_scc1 L_c1')
    A('s_mov_b32 s5, 0')
    mod_issue()
    A(f'v_mov_b32 v12, 0\nds_write_b32 v12, v12 offset:{LCNT}')
    A.label('L_c1')
    A('s_and_b32 s61, s2, 7\ns_lshr_b32 s62, s2, 3')
    A('s_lshl_b32 s4, s61, 7\ns_lshl_b32 s9, s3, 5\ns_add_u32 s63, s4, s9')
    A(f's_lshl_b32 s4, s63, 13\ns_lshl_b32 s9, s62, 8\ns_add_u32 s4, s4, s9')
    A(f'v_lshlrev_b32 v14, 16, v{HI}\nv_lshlrev_b32 v15, 4, v{LOr}\nv_add3_u32 v14, v14, v15, s4')
    tile_loads(W2R, 14, 's[52:55]', 8192)
    XR = 88
    A('v_lshrrev_b32 v15, 5, v0\nv_lshlrev_b32 v15, 11, v15\nv_and_b32 v18, 31, v0\nv_lshlrev_b32 v18, 4, v18\nv_add_u32 v15, v15, v18')
    for i in range(4): A(f'global_load_dwordx4 {v(XR+4*i,4)}, v15, s[16:17] offset:{512*i}')
    A(f'v_lshrrev_b32 v15, 2, v{LOr}\nv_and_b32 v15, 1, v15\nv_cmp_eq_u32 s[64:65], 1, v15\nv_lshlrev_b32 v15, 11, v15')
    A(f'v_lshlrev_b32 v18, 4, v{HI}\nv_and_b32 v19, 1, v{LOr}\nv_lshlrev_b32 v19, 3, v19\nv_add3_u32 v15, v15, v18, v19')
    A('s_lshl_b32 s4, s63, 1\nv_add_u32 v15, s4, v15')
    A('global_load_dwordx2 v[18:19], v15, s[16:17]')
    A('s_waitcnt lgkmcnt(0)')
    A('s_barrier')
    A('s_add_u32 s60, s60, 0x01010101')
    A('s_and_b32 s56, s60, 0xff\ns_bfe_u32 s57, s60, 0x80008\ns_bfe_u32 s58, s60, 0x80010\ns_lshr_b32 s59, s60, 24')
    A('s_cmp_lg_u32 s3, 0\ns_cbranch_scc1 L_c2')
    A('s_waitcnt vmcnt(0)')
    mod_compute(0)
    stamp(1)
    A('v_lshrrev_b32 v15, 5, v0\nv_lshlrev_b32 v15, 11, v15\nv_and_b32 v20, 31, v0\nv_lshlrev_b32 v20, 4, v20\nv_add_u32 v15, v15, v20')
    for i in range(4): A(f'global_load_dwordx4 {v(XR+4*i,4)}, v15, s[16:17] offset:{512*i}')
    A.label('L_c2')
    A('s_waitcnt vmcnt(0)')
    def ln_stats(src, n, cnt, steps, XU, acc):
        A(f'v_add_f32 v{acc}, v{src}, v{src+1}')
        for i in range(2, n): A(f'v_add_f32 v{acc}, v{acc}, v{src+i}')
        red('v_add_f32', [acc], steps, [acc + 2])
        A(f'v_mul_f32 v{acc}, {hx(f2u(1.0/cnt))}, v{acc}')
        A(f'v_sub_f32 v{acc+2}, v{src}, v{acc}\nv_mul_f32 v{acc+1}, v{acc+2}, v{acc+2}')
        for i in range(1, n):
            A(f'v_sub_f32 v{acc+2+(i&1)}, v{src+i}, v{acc}\nv_fmac_f32 v{acc+1}, v{acc+2+(i&1)}, v{acc+2+(i&1)}')
        red('v_add_f32', [acc + 1], steps, [acc + 2])
        A(f'v_mul_f32 v{acc+1}, {hx(f2u(1.0/cnt))}, v{acc+1}')
        rnd2(acc, acc + 1, acc + 2)
        A(f'v_add_f32 v{acc+1}, {hx(f2u(1e-5))}, v{acc+1}')
        rnd1(acc + 1)
        A(f'v_sqrt_f32 v{acc+1}, v{acc+1}')
        rnd1(acc + 1)
        A(f'v_rcp_f32 v{acc+1}, v{acc+1}')
    XU = 104
    for r in range(16):
        A(f'v_lshlrev_b32 v{XU+2*r}, 16, v{XR+r}\nv_and_b32 v{XU+2*r+1}, 0xffff0000, v{XR+r}')
    ln_stats(XU, 32, 1024, [X1_, X2_, HM, RM, 'p16'], None, 4)
    A('v_readlane_b32 s4, v4, 0\nv_readlane_b32 s5, v4, 32\nv_readlane_b32 s7, v5, 0\nv_readlane_b32 s8, v5, 32')
    A('v_mov_b32 v4, s4\nv_mov_b32 v6, s5\nv_mov_b32 v5, s7\nv_mov_b32 v7, s8')
    A('v_cndmask_b32 v4, v4, v6, s[64:65]\nv_cndmask_b32 v5, v5, v7, s[64:65]')
    LN = 20
    A('v_lshlrev_b32 v20, 16, v18\nv_and_b32 v21, 0xffff0000, v18\nv_lshlrev_b32 v22, 16, v19\nv_and_b32 v23, 0xffff0000, v19')
    for k in range(4): A(f'v_sub_f32 v{LN+k}, v{LN+k}, v4')
    rnd2(LN, LN + 1, 6); rnd2(LN + 2, LN + 3, 7)
    for k in range(4): A(f'v_mul_f32 v{LN+k}, v{LN+k}, v5')
    rnd2(LN, LN + 1, 6); rnd2(LN + 2, LN + 3, 7)
    BF = 72
    for t in range(4): perm_pair(BF + 8 * t, BF + 8 * t + 4, W2R, t)
    GR = 104
    A('s_lshl_b32 s4, s61, 1\ns_lshr_b32 s5, s3, 1\ns_add_u32 s4, s4, s5\ns_lshl_b32 s4, s4, 14')
    A(f's_and_b32 s5, s3, 1\ns_lshl_b32 s5, s5, 7\ns_add_u32 s4, s4, s5\ns_add_u32 s4, s4, {MODP}')
    A(f'v_lshrrev_b32 v4, 3, v{LOr}\nv_lshlrev_b32 v4, 13, v4')
    A(f'v_and_b32 v5, 6, v{LOr}\nv_lshlrev_b32 v5, 7, v5')
    A(f'v_and_b32 v6, 1, v{LOr}\nv_lshlrev_b32 v6, 4, v6\nv_lshlrev_b32 v7, 5, v{HI}')
    A('v_add3_u32 v4, v4, v5, v6\nv_add3_u32 v4, v4, v7, s4')
    stamp(2)
    gather(GR, 8, 4, [1024 * i for i in range(8)], 5)
    stamp(3)
    def sum8(dst, n=8):
        for k in range(4):
            A(f'v_add_f32 v{dst+k}, v{GR+k}, v{GR+4+k}')
        for i in range(2, n):
            for k in range(4): A(f'v_add_f32 v{dst+k}, v{dst+k}, v{GR+4*i+k}')
    sum8(4)
    red('v_add_f32', [4, 5, 6, 7], [R8], None)
    rnd2(4, 5, 8); rnd2(6, 7, 9)
    A('v_mov_b32 v12, 1.0')
    for k in range(4): A(f'v_add_f32_dpp v{8+k}, v{4+k}, v12 quad_perm:[2,3,2,3] row_mask:0xf bank_mask:0xf')
    rnd2(8, 9, 13); rnd2(10, 11, 14)
    for k in range(4): A(f'v_mul_f32 v{8+k}, v{8+k}, v{LN+k}')
    rnd2(8, 9, 13); rnd2(10, 11, 14)
    for k in range(4): A(f'v_add_f32_dpp v{8+k}, v{4+k}, v{8+k} quad_perm:[0,1,0,1] row_mask:0xf bank_mask:0xf')
    A('v_cvt_pk_bf16_f32 v12, v8, v9\nv_cvt_pk_bf16_f32 v13, v10, v11')
    A('v_mov_b32_dpp v4, v12 quad_perm:[0,0,2,2] row_mask:0xf bank_mask:0xf')
    A('v_mov_b32_dpp v5, v13 quad_perm:[0,0,2,2] row_mask:0xf bank_mask:0xf')
    A('v_mov_b32_dpp v6, v12 quad_perm:[1,1,3,3] row_mask:0xf bank_mask:0xf')
    A('v_mov_b32_dpp v7, v13 quad_perm:[1,1,3,3] row_mask:0xf bank_mask:0xf')
    AC2 = 40
    for n in range(8): mfma(AC2 + 4 * n, 4, BF + 4 * n, True)
    A('s_lshl_b32 s4, s3, 10\nv_lshlrev_b32 v18, 4, v0\nv_add_u32 v19, s4, v18')
    select_out(8, AC2)
    A(f'ds_write_b128 v19, v[8:11] offset:{LRED}')
    A('v_mov_b32 v12, 0\nv_mov_b32 v13, 1')
    A('s_waitcnt lgkmcnt(0)')
    A('s_mov_b64 exec, 1')
    A(f'ds_add_rtn_u32 v13, v12, v13 offset:{LCNT}')
    A('s_mov_b64 exec, -1')
    A('s_waitcnt lgkmcnt(0)')
    A('v_readfirstlane_b32 s4, v13')
    A('s_cmp_lg_u32 s4, 3\ns_cbranch_scc1 L_c3')
    def red4_publish(vaddr):
        for i in range(4): A(f'ds_read_b128 {v(GR+4*i,4)}, v18 offset:{LRED+1024*i}')
        A('s_waitcnt lgkmcnt(0)')
        sum8(4, 4)
        embed(8, [4, 5, 6, 7], VFF)
        A(f'buffer_store_dwordx4 v[8:11], v{vaddr}, s[44:47], 0 offen sc1')
    A(f's_lshl_b32 s4, s62, 3\ns_add_u32 s4, s4, s61\ns_lshl_b32 s4, s4, 9\ns_add_u32 s4, s4, {QP}')
    A(f'v_and_b32 v12, 1, v{HI}\nv_lshlrev_b32 v12, 17, v12\nv_add3_u32 v12, v12, v17, s4')
    red4_publish(12)
    A.label('L_c3')
    stamp(4)
    A(f's_lshl_b32 s4, s61, 3\ns_lshl_b32 s5, s3, 1\ns_add_u32 s4, s4, s5\ns_lshl_b32 s4, s4, 12\ns_add_u32 s4, s4, {QP}')
    A('v_lshrrev_b32 v4, 5, v0\nv_lshlrev_b32 v4, 12, v4\nv_and_b32 v5, 31, v0\nv_lshlrev_b32 v5, 4, v5\nv_add3_u32 v4, v4, v5, s4')
    gather(GR, 8, 4, [512 * i for i in range(8)], 5)
    sum8(4)
    A('v_cvt_pk_bf16_f32 v4, v4, v5\nv_cvt_pk_bf16_f32 v5, v6, v7')
    A('s_lshl_b32 s4, s3, 9\nv_lshlrev_b32 v6, 3, v0\nv_add_u32 v6, s4, v6')
    A(f'ds_write_b64 v6, v[4:5] offset:{LQ}')
    A('s_waitcnt lgkmcnt(0)')
    stamp(5)
    A('s_barrier')
    A('s_barrier')
    stamp(6)
    A('s_cmp_eq_u32 s3, 0\ns_cbranch_scc1 L_own')
    A('s_cmp_eq_u32 s3, 3\ns_cbranch_scc1 L_stat')
    A('s_mov_b32 s5, s3')
    mod_issue()
    mod_compute(0)
    A('s_branch L_c4')
    A.label('L_stat')
    A(f'v_lshlrev_b32 v4, 3, v0\nds_read_b64 v[20:21], v4 offset:{LST}')
    A(f's_mov_b32 s9, {hx(f2u(LOG2E))}')
    A('s_waitcnt lgkmcnt(0)')
    A('v_mov_b32 v4, v20')
    red('v_max_f32', [4], [R8, 'p16', 'p32'], [6])
    A('v_sub_f32 v5, v20, v4\nv_mul_f32 v5, s9, v5\nv_exp_f32 v5, v5\nv_mul_f32 v5, v5, v21')
    red('v_add_f32', [5], [R8, 'p16', 'p32'], [6])
    embed(8, [4, 5, 4, 5], VFF)
    A(f's_lshl_b32 s4, s61, 12\ns_lshl_b32 s5, s62, 7\ns_add_u32 s5, s5, s4\ns_add_u32 s5, s5, {ST}\ns_add_u32 s4, s4, {ST}')
    A('v_add_u32 v12, s5, v18')
    A('s_mov_b64 exec, 0xff')
    A('buffer_store_dwordx4 v[8:11], v12, s[44:47], 0 offen sc1')
    A('s_mov_b64 exec, -1')
    A('v_add_u32 v12, s4, v18')
    gather(GR, 4, 12, [1024 * i for i in range(4)], 5)
    A(f'v_max3_f32 v4, v{GR}, v{GR+4}, v{GR+8}\nv_max_f32 v4, v4, v{GR+12}')
    red('v_max_f32', [4], [R8, 'p16', 'p32'], [6])
    for i in range(4): A(f'v_sub_f32 v{8+i}, v{GR+4*i}, v4')
    for i in range(4): A(f'v_mul_f32 v{8+i}, s9, v{8+i}')
    for i in range(4): A(f'v_exp_f32 v{8+i}, v{8+i}')
    A(f'v_mul_f32 v5, v8, v{GR+1}')
    for i in range(1, 4): A(f'v_fmac_f32 v5, v{8+i}, v{GR+4*i+1}')
    red('v_add_f32', [5], [R8, 'p16', 'p32'], [6])
    A('v_rcp_f32 v5, v5\nv_sub_f32 v6, v20, v4\nv_mul_f32 v6, s9, v6\nv_exp_f32 v6, v6\nv_mul_f32 v6, v6, v5')
    A('v_and_b32 v7, 7, v0\nv_lshlrev_b32 v7, 5, v7\nv_lshrrev_b32 v8, 3, v0\nv_lshlrev_b32 v8, 2, v8\nv_add_u32 v7, v7, v8')
    A(f'ds_write_b32 v7, v6 offset:{LF}')
    A('s_branch L_c4')
    A.label('L_own')
    A('s_and_b32 s66, s2, 1\ns_lshr_b32 s67, s2, 1\ns_lshl_b32 s67, s67, 3')
    A('s_lshr_b32 s4, s67, 6\ns_lshl_b32 s4, s4, 14\ns_and_b32 s5, s67, 63\ns_lshl_b32 s5, s5, 2\ns_add_u32 s4, s4, s5')
    A(f's_lshl_b32 s5, s66, 9\ns_add_u32 s4, s4, s5\ns_add_u32 s4, s4, {MODP + 256*1024}')
    A(f'v_lshrrev_b32 v4, 1, v{HI}\nv_lshlrev_b32 v4, 18, v4\nv_and_b32 v5, 1, v{HI}\nv_lshlrev_b32 v5, 8, v5')
    A(f'v_and_b32 v6, 4, v{LOr}\nv_lshlrev_b32 v6, 2, v6\nv_add3_u32 v4, v4, v5, v6')
    A(f'v_and_b32 v5, 3, v{LOr}\nv_lshlrev_b32 v5, 11, v5\nv_and_b32 v6, 8, v{LOr}\nv_lshlrev_b32 v6, 10, v6')
    A('v_add3_u32 v4, v4, v5, v6\nv_add_u32 v4, s4, v4')
    gather(GR, 2, 4, [0, 1024], 5)
    sum8(4, 2)
    red('v_add_f32', [4, 5, 6, 7], [X1_, X2_, R8], None)
    rnd2(4, 5, 8); rnd2(6, 7, 9)
    for k in range(4): A(f'v_add_f32 v{8+k}, 1.0, v{4+k}')
    rnd2(8, 9, 12); rnd2(10, 11, 13)
    A(f'v_cmp_eq_u32 vcc, 2, v{HI}')
    for k in range(4): A(f'v_cndmask_b32 v{4+k}, v{4+k}, v{8+k}, vcc')
    A(f'v_lshlrev_b32 v12, 5, v{HI}\nv_lshlrev_b32 v13, 2, v{LOr}\nv_add_u32 v12, v12, v13')
    embed(8, [4, 5, 6, 7], VFF)
    A(f's_lshl_b32 s4, s66, 13\ns_lshl_b32 s5, s67, 2\ns_add_u32 s4, s4, s5\ns_add_u32 s4, s4, {FIN-4096}')
    A(f'v_lshlrev_b32 v14, 12, v{HI}\nv_add3_u32 v14, v14, v13, s4')
    A('s_mov_b32 exec_lo, 0x00110011\ns_mov_b32 exec_hi, 0x00110011')
    A(f'ds_write_b128 v12, v[4:7] offset:{LOWN}')
    A('s_mov_b32 exec_lo, 0x00110000\ns_mov_b32 exec_hi, 0x00000011')
    A('buffer_store_dwordx4 v[8:11], v14, s[44:47], 0 offen sc1')
    A('s_mov_b64 exec, -1')
    A(f's_lshl_b32 s4, s66, 13\ns_add_u32 s4, s4, {FIN}\nv_add_u32 v4, s4, v18')
    FG = 136
    gather(FG, 8, 4, [1024 * i for i in range(8)], 5)
    A('s_lshl_b32 s4, s66, 11\ns_lshl_b32 s5, s67, 1\ns_add_u32 s4, s4, s5\nv_lshrrev_b32 v4, 5, v0\nv_lshlrev_b32 v4, 3, v4\nv_add_u32 v4, s4, v4')
    A('global_load_dwordx2 v[24:25], v4, s[16:17]')
    A('v_mov_b32 v4, 0\nglobal_load_ushort v26, v4, s[34:35]')
    A.label('L_c4')
    stamp(7)
    A(f's_mov_b32 s52, s24\ns_mov_b32 s53, s25')
    A('s_lshl_b32 s68, s61, 2\ns_and_b32 s4, s62, 3\ns_add_u32 s68, s68, s4\ns_lshr_b32 s69, s2, 5')
    A('s_lshl_b32 s4, s68, 7\ns_lshl_b32 s5, s3, 5\ns_add_u32 s4, s4, s5\ns_lshl_b32 s4, s4, 11\ns_lshl_b32 s5, s69, 8\ns_add_u32 s4, s4, s5')
    A(f'v_lshlrev_b32 v14, 14, v{HI}\nv_lshlrev_b32 v15, 4, v{LOr}\nv_add3_u32 v14, v14, v15, s4')
    tile_loads(W2R, 14, 's[52:55]', 2048)
    A(f's_lshl_b32 s4, s61, 5\ns_add_u32 s4, s4, s62\ns_lshl_b32 s4, s4, 12\ns_lshl_b32 s5, s3, 10\ns_add_u32 s4, s4, s5\ns_add_u32 s4, s4, {OP}')
    A(f'v_lshrrev_b32 v4, 5, v0\nv_lshlrev_b32 v5, 9, v4\nv_lshlrev_b32 v6, 5, v{LOr}\nv_and_b32 v7, 16, v0\nv_add3_u32 v27, v5, v6, v7\nv_add_u32 v27, s4, v27')
    A('s_lshl_b32 s4, s3, 6\nv_lshlrev_b32 v28, 5, v4\nv_add_u32 v28, s4, v28')
    A(f's_lshr_b32 s4, s68, 3\ns_lshl_b32 s4, s4, 17\ns_and_b32 s5, s68, 7\ns_lshl_b32 s5, s5, 9\ns_add_u32 s4, s4, s5\ns_lshl_b32 s5, s3, 7\ns_add_u32 s4, s4, s5\ns_add_u32 s4, s4, {OP}')
    A(f'v_and_b32 v4, 4, v{LOr}\nv_lshlrev_b32 v4, 17, v4\nv_and_b32 v5, 3, v{LOr}\nv_lshlrev_b32 v5, 14, v5\nv_and_b32 v6, 8, v{LOr}\nv_lshlrev_b32 v6, 13, v6')
    A(f'v_add3_u32 v4, v4, v5, v6\nv_lshlrev_b32 v5, 5, v{HI}\nv_add3_u32 v29, v4, v5, s4')
    A(f's_lshl_b32 s4, s68, 13\ns_lshl_b32 s5, s69, 9\ns_add_u32 s4, s4, s5\ns_add_u32 s4, s4, {AP}')
    A(f'v_and_b32 v4, 1, v{HI}\nv_lshlrev_b32 v4, 12, v4\nv_add3_u32 v30, v4, v17, s4')
    A('s_waitcnt vmcnt(0)')
    for t in range(4): perm_pair(BF + 8 * t, BF + 8 * t + 4, W2R, t)
    A('s_waitcnt lgkmcnt(0)')
    stamp(8)
    A('s_barrier')
    A(f'ds_read_b128 v[4:7], v28 offset:{LF}\nds_read_b128 v[8:11], v28 offset:{LF+16}')
    for w in range(8): A(f'ds_read_b128 {v(GR+4*w,4)}, v19 offset:{LO+4096*w}')
    for w in range(8):
        A(f's_waitcnt lgkmcnt({7-w})')
        for k in range(4):
            if w == 0: A(f'v_mul_f32 v{12+k}, v4, v{GR+k}')
            else: A(f'v_fmac_f32 v{12+k}, v{4+w}, v{GR+4*w+k}')
    embed(4, [12, 13, 14, 15], VFF)
    A('buffer_store_dwordx4 v[4:7], v27, s[44:47], 0 offen sc1')
    stamp(9)
    gather(GR, 8, 29, [(i >> 1) * 4096 + (i & 1) * 16 for i in range(8)], 12)
    stamp(10)
    for k in range(8):
        A(f'v_add_f32 v{4+k}, v{GR+k}, v{GR+8+k}')
    for i in (2, 3):
        for k in range(8): A(f'v_add_f32 v{4+k}, v{4+k}, v{GR+8*i+k}')
    red('v_add_f32', list(range(4, 12)), [X1_, X2_, R8], None)
    for k in range(4): A(f'v_cvt_pk_bf16_f32 v{4+k}, v{4+2*k}, v{5+2*k}')
    for n in range(8): mfma(AC2 + 4 * n, 4, BF + 4 * n, True)
    select_out(8, AC2)
    A(f'ds_write_b128 v19, v[8:11] offset:{LRED}')
    A('s_waitcnt lgkmcnt(0)')
    A('s_barrier')
    A('s_cmp_eq_u32 s3, 0\ns_cbranch_scc1 L_fin')
    A('s_cmp_lg_u32 s3, 1\ns_cbranch_scc1 L_c5')
    red4_publish(30)
    A.label('L_c5')
    A('s_barrier')
    A('s_barrier')
    stamp(11)
    stamp_flush(12)
    A('s_endpgm')
    A.label('L_fin')
    A(f's_lshl_b32 s4, s66, 12\ns_lshl_b32 s5, s67, 2\ns_add_u32 s4, s4, s5\ns_add_u32 s5, s4, {AP}')
    A('v_and_b32 v4, 31, v0\nv_lshlrev_b32 v4, 13, v4\nv_lshrrev_b32 v5, 5, v0\nv_lshlrev_b32 v5, 4, v5\nv_add3_u32 v4, v4, v5, s5')
    A(f'ds_read_b128 v[20:23], v5 offset:{LOWN}')
    A(f'ds_read_b128 v[32:35], v5 offset:{LOWN+96}')
    A(f's_add_u32 s5, s4, {X1}\nv_add_u32 v31, s5, v5')
    gather(GR, 1, 4, [0], 6)
    stamp(11)
    red('v_add_f32', [GR, GR + 1, GR + 2, GR + 3], [X1_, X2_, HM, RM, 'p16'], [8, 9, 10, 11])
    rnd2(GR, GR + 1, 8); rnd2(GR + 2, GR + 3, 9)
    A('s_waitcnt lgkmcnt(0)')
    for k in range(4): A(f'v_mul_f32 v{GR+k}, v{GR+k}, v{20+k}')
    rnd2(GR, GR + 1, 8); rnd2(GR + 2, GR + 3, 9)
    A('v_lshlrev_b32 v20, 16, v24\nv_and_b32 v21, 0xffff0000, v24\nv_lshlrev_b32 v22, 16, v25\nv_and_b32 v23, 0xffff0000, v25')
    for k in range(4): A(f'v_add_f32 v{20+k}, v{20+k}, v{GR+k}')
    rnd2(20, 21, 8); rnd2(22, 23, 9)
    embed(8, [20, 21, 22, 23], VFF)
    A('s_mov_b32 exec_lo, 1\ns_mov_b32 exec_hi, 1')
    A('buffer_store_dwordx4 v[8:11], v31, s[44:47], 0 offen sc1')
    A('s_mov_b64 exec, -1')
    A(f's_lshl_b32 s4, s66, 12\ns_add_u32 s4, s4, {X1}\nv_add_u32 v4, s4, v18')
    gather(GR, 4, 4, [1024 * i for i in range(4)], 5)
    stamp(12)
    ALL = [X1_, X2_, HM, RM, 'p16', 'p32']
    ln_stats(GR, 16, 1024, ALL, None, 4)
    for k in range(16): A(f'v_sub_f32 v{GR+k}, v{GR+k}, v4')
    for k in range(0, 16, 2): rnd2(GR + k, GR + k + 1, 8 + (k // 2) % 4)
    for k in range(16): A(f'v_mul_f32 v{GR+k}, v{GR+k}, v5')
    for k in range(0, 16, 2): rnd2(GR + k, GR + k + 1, 8 + (k // 2) % 4)
    for k in range(16): A(f'v_mul_f32 v{GR+k}, v{GR+k}, v{FG+16+k}')
    for k in range(0, 16, 2): rnd2(GR + k, GR + k + 1, 8 + (k // 2) % 4)
    for k in range(16): A(f'v_add_f32 v{GR+k}, v{GR+k}, v{FG+k}')
    for k in range(0, 16, 2): rnd2(GR + k, GR + k + 1, 8 + (k // 2) % 4)
    for i in range(4): A(f'ds_write_b128 v18, {v(GR+4*i,4)} offset:{LO+1024*i}')
    A('s_lshl_b32 s4, s67, 2\nv_lshrrev_b32 v12, 5, v0\nv_lshlrev_b32 v12, 4, v12\nv_add_u32 v13, s4, v12')
    A('s_waitcnt lgkmcnt(0)')
    A(f'ds_read_b128 v[36:39], v13 offset:{LO}')
    ln_stats(GR, 16, 1024, ALL, None, 4)
    A('s_waitcnt lgkmcnt(0)')
    for k in range(4): A(f'v_sub_f32 v{36+k}, v{36+k}, v4')
    rnd2(36, 37, 8); rnd2(38, 39, 9)
    for k in range(4): A(f'v_mul_f32 v{36+k}, v{36+k}, v5')
    rnd2(36, 37, 8); rnd2(38, 39, 9)
    A('s_mov_b32 exec_lo, 1\ns_mov_b32 exec_hi, 1')
    A(f'ds_write_b128 v12, v[36:39] offset:{LH2}')
    A('s_mov_b64 exec, -1')
    A('s_waitcnt lgkmcnt(0)')
    stamp(13)
    A('s_barrier')
    A('s_cmp_lg_u32 s2, 0\ns_cbranch_scc1 L_f2')
    A('v_mov_b32 v4, 0\nv_mov_b32 v5, s60\ns_mov_b64 exec, 1')
    A('buffer_store_dword v5, v4, s[44:47], 0 offen sc1')
    A('s_mov_b64 exec, -1')
    A.label('L_f2')
    A('v_lshlrev_b32 v26, 16, v26')
    A('s_lshl_b32 s4, s66, 11\ns_lshl_b32 s5, s67, 1\ns_add_u32 s4, s4, s5\nv_lshrrev_b32 v13, 1, v12\nv_add_u32 v13, s4, v13')
    A('s_barrier')
    for w in range(8): A(f'ds_read_b128 {v(GR+4*w,4)}, v12 offset:{LMLP+32*w}')
    A('s_waitcnt lgkmcnt(0)')
    sum8(4)
    rnd2(4, 5, 8); rnd2(6, 7, 9)
    for k in range(4): A(f'v_add_f32 v{4+k}, v{4+k}, v26')
    rnd2(4, 5, 8); rnd2(6, 7, 9)
    for k in range(4): A(f'v_mul_f32 v{4+k}, v{4+k}, v{32+k}')
    rnd2(4, 5, 8); rnd2(6, 7, 9)
    for k in range(4): A(f'v_add_f32 v{4+k}, v{4+k}, v{20+k}')
    A('v_cvt_pk_bf16_f32 v4, v4, v5\nv_cvt_pk_bf16_f32 v5, v6, v7')
    A('s_mov_b32 exec_lo, 1\ns_mov_b32 exec_hi, 1')
    A('global_store_dwordx2 v13, v[4:5], s[40:41]')
    stamp(14)
    stamp_flush(15)
    A.label('L_end')
    A('s_endpgm')
    A.raw('.section .rodata,"a"'); A.raw('.p2align 6'); A.raw(f'.amdhsa_kernel {KN}')
    A.raw('  .amdhsa_next_free_vgpr 168'); A.raw('  .amdhsa_next_free_sgpr 102'); A.raw('  .amdhsa_accum_offset 168')
    A.raw('  .amdhsa_group_segment_fixed_size 0'); A.raw('  .amdhsa_kernarg_size 120'); A.raw('  .amdhsa_user_sgpr_count 2')
    A.raw('  .amdhsa_user_sgpr_kernarg_segment_ptr 1'); A.raw('  .amdhsa_system_sgpr_workgroup_id_x 1'); A.raw('.end_amdhsa_kernel')
    return A.text()

if __name__ == '__main__':
    open('k1.s', 'w').write(gen(False))
    open('k1_st.s', 'w').write(gen(True))
```

```python
import sys, struct
from asmlib import Asm
KN = 'adaLN_cond__gqa_block_cached__mixer_token_mlp__decode_kernel'

def f2u(x): return struct.unpack('<I', struct.pack('<f', x))[0]
def hx(x): return '0x%08x' % (x & 0xffffffff)
LOG2E = 1.4426950408889634
STAMP_OFF = 200 << 20
LQ = 0; LST = 2048; LF = 2560; LCNT = 2816; LXS = 2880; LRED = 3072; LTP = 7168; LRED2 = 9216; LT = 13312
C_P2, C_Q, C_ST, C_XS, C_TB, C_WO, C_V, C_PL, C_MR, C_H, C_T1, C_T2 = [LCNT + 4 * i for i in range(12)]
NB = 20; E0 = 111
LV = LT + NB * 1024
POLL_LIMIT = 131072
def v(a, n=1): return f'v{a}' if n == 1 else f'v[{a}:{a+n-1}]'
def log2(x):
    l = x.bit_length() - 1
    return l if (1 << l) == x else None

def gen(stamps=0, D1=3, D2=3, D3=4, N3=24, STAT=20, force_fb=0, abl=0, N1=13, N10=10, N2=15,
        ROT=0, GRP=0, SL=8448, cpf=0, OS=0, GS=0, nost=0, NET=128, loc=1, r1st=0, NL=14, cpf0=1, tlb=0, K0=3, B0e=0,
        WOAT=31, WOC=8, PREAT=24, MRP=2, PT1=2, O2F=0, OST=32, hold=0, TH_=20, TQ=38, TGC=8):
    ST = 0x8000; CS = 0x10000; XS = 0x12000; HR = 0x14000; TB = 0x18000; Q2 = 0x20000; O2 = 0x40000
    SLOT = 0x60000
    MODP = SLOT; QP = SLOT + 1024; MODR = SLOT + 2048; AP = SLOT + 3072; OP = SLOT + 4096
    WS_USED = SLOT + 256 * SL
    LOC = '' if loc else 'sc1'
    A = Asm()
    A.raw(f'; @launch grid=(256,1,1) block=(768,1,1) lds={LV + 8 * NL * 1024}')
    A.raw('.amdgcn_target "amdgcn-amd-amdhsa--gfx950"')
    A.raw('.text'); A.raw(f'.globl {KN}'); A.raw('.p2align 8'); A.raw(f'.type {KN},@function'); A.raw(f'{KN}:')
    SB = 72
    def stamp(i):
        if stamps: A(f's_memrealtime s[70:71]\ns_waitcnt lgkmcnt(0)\ns_mov_b32 s{SB+i}, s70')
    def stamp_flush(n):
        if not stamps: return
        A('s_waitcnt lgkmcnt(0) vmcnt(0)')
        A('s_mov_b64 exec, 1')
        A(f's_mul_i32 s4, s2, 12\ns_add_u32 s4, s4, s3\ns_lshl_b32 s4, s4, 7\ns_add_u32 s4, s4, {STAMP_OFF}')
        A('v_mov_b32 v1, s4\nv_mov_b32 v3, 0')
        for i in range(n):
            A(f'v_mov_b32 v2, s{SB+i}')
            A(f'global_store_dwordx2 v1, v[2:3], s[42:43] offset:{8*i}')
            A('s_nop 1')
    def sexpr(dst, terms, const=0, tmp='s5'):
        first = True
        for src, pos, n, mult in terms:
            t = dst if first else tmp
            A(f's_bfe_u32 {t}, {src}, {hex((n << 16) | pos)}')
            if mult != 1:
                l = log2(mult)
                A(f's_lshl_b32 {t}, {t}, {l}' if l is not None else f's_mul_i32 {t}, {t}, {mult}')
            if not first: A(f's_add_u32 {dst}, {dst}, {tmp}')
            first = False
        if first: A(f's_mov_b32 {dst}, {const}')
        elif const: A(f's_add_u32 {dst}, {dst}, {const}')
    def addr(dst, lane, sterms=(), const=0, tmp=None):
        has_s = bool(sterms) or const
        if has_s: sexpr('s4', sterms, const)
        acc = None
        for pos, n, mult in lane:
            l = log2(mult)
            t = dst if acc is None and not has_s else tmp
            if pos == 0 and n == 6: src = 'v0'
            elif pos + n == 6: A(f'v_lshrrev_b32 v{t}, {pos}, v0'); src = f'v{t}'
            elif pos == 0: A(f'v_and_b32 v{t}, {(1<<n)-1}, v0'); src = f'v{t}'
            else: A(f'v_bfe_u32 v{t}, v0, {pos}, {n}'); src = f'v{t}'
            prev = acc if acc is not None else ('s4' if has_s else None)
            if prev is None:
                A(f'v_lshlrev_b32 v{dst}, {l}, {src}' if l is not None else f'v_mul_u32_u24 v{dst}, {mult}, {src}')
            elif l is not None:
                A(f'v_lshl_add_u32 v{dst}, {src}, {l}, {prev}')
            else:
                A(f'v_mul_u32_u24 v{t}, {mult}, {src}\nv_add_u32 v{dst}, {prev}, v{t}')
            acc = f'v{dst}'
    def rnd2(a, b, tmp):
        A(f'v_cvt_pk_bf16_f32 v{tmp}, v{a}, v{b}\nv_lshlrev_b32 v{a}, 16, v{tmp}\nv_and_b32 v{b}, 0xffff0000, v{tmp}')
    def rnd1(a):
        A(f'v_cvt_pk_bf16_f32 v{a}, v{a}, v{a}\nv_and_b32 v{a}, 0xffff0000, v{a}')
    MK = 'row_mask:0xf bank_mask:0xf'
    X1_ = 'quad_perm:[1,0,3,2]'; X2_ = 'quad_perm:[2,3,0,1]'; HM = 'row_half_mirror'; RM = 'row_mirror'; R8 = 'row_ror:8'
    def red(op, regs, steps, tmp=None):
        for s in steps:
            if s in ('p16', 'p32'):
                for r, t in zip(regs, tmp): A(f'v_mov_b32 v{t}, v{r}')
                for r, t in zip(regs, tmp): A(f'v_permlane{s[1:]}_swap_b32 v{r}, v{t}')
                for r, t in zip(regs, tmp): A(f'{op} v{r}, v{r}, v{t}')
            else:
                for r in regs: A(f'{op}_dpp v{r}, v{r}, v{r} {s} {MK}')
    def tred(kind, pairs):
        for a, b in pairs: A(f'v_permlane{kind}_swap_b32 v{a}, v{b}')
        for a, b in pairs: A(f'v_add_f32 v{a}, v{a}, v{b}')
    def embed(dst, srcs, rnd=True):
        if rnd:
            for k, s in enumerate(srcs): A(f'v_add_u32 v{dst+k}, 0x80, v{s}')
            srcs = range(dst, dst + 4)
        for k, s in enumerate(srcs): A(f'v_bfi_b32 v{dst+k}, v3, s{56+k}, v{s}')
    def wsload(r, vaddr, o):
        so = o & ~0xfff; io = o & 0xfff
        if so: A(f's_mov_b32 s11, {so}')
        A(f'buffer_load_dwordx4 {v(r,4)}, v{vaddr}, s[44:47], {"s11" if so else "0"} offen offset:{io} sc1')
    mk = lambda i: f's[{86+2*i}:{87+2*i}]'
    def check(r, i, tmp, full):
        if full == 2:
            A(f'v_xor_b32 v{tmp}, s60, v{r+1}\nv_bitop3_b32 v{tmp}, v{tmp}, v{r+3}, s60 bitop3:0xf6\nv_cmp_ne_u32 {mk(i)}, 0, v{tmp}')
        elif full: A(f'v_cmp_ne_u32 {mk(i)}, s60, v{r+3}')
        else:
            for k in range(4): A(f'v_xor_b32 v{r+k}, s{56+k}, v{r+k}')
            A(f'v_or3_b32 v{tmp}, v{r}, v{r+1}, v{r+2}')
            A(f'v_bitop3_b32 v{tmp}, v{tmp}, v{r+3}, v3 bitop3:0xa8')
            A(f'v_cmp_ne_u32 {mk(i)}, 0, v{tmp}')
    def spin(dst, vaddr, offs, tmp, full=False, net=False, sleep=0, mid=None):
        if abl & 2:
            if mid: A('s_waitcnt vmcnt(0)'); mid()
            return
        n = len(offs)
        L = A.newlabel('Lsp'); E = A.newlabel('Lspe'); R = A.newlabel('Lspr')
        for i, o in enumerate(offs): A(f's_mov_b32 s{88+i}, {o & ~0xfff}')
        A(f's_mov_b32 s10, {POLL_LIMIT}')
        def loads():
            for i, o in enumerate(offs): A(f'buffer_load_dwordx4 {v(dst+4*i,4)}, v{vaddr}, s[44:47], s{88+i} offen offset:{o & 0xfff} sc1')
        if mid:
            loads(); mid(); A(f's_branch {R}')
        A.label(L)
        loads()
        A.label(R)
        A('s_sub_u32 s10, s10, 1')
        A(f's_and_b32 s8, s10, {NET-1}')
        X = A.newlabel('Lspx'); Y = A.newlabel('Lspy')
        A(f's_cbranch_scc0 {X}')
        A.label(Y)
        for i in range(n):
            r = dst + 4 * i
            A(f's_waitcnt vmcnt({n-1-i})')
            if full == 2: A(f'v_xor_b32 v{tmp}, s60, v{r+1}\nv_bitop3_b32 v{tmp}, v{tmp}, v{r+3}, s60 bitop3:0xf6')
            elif full: A(f'v_xor_b32 v{tmp}, s60, v{r+3}')
            else:
                for k in range(4):
                    if i == 0 and k == 0: A(f'v_xor_b32 v{tmp}, s56, v{r}')
                    else: A(f'v_bitop3_b32 v{tmp}, v{tmp}, v{r+k}, s{56+k} bitop3:0xf6')
        if not full: A(f'v_and_b32 v{tmp}, 0xff, v{tmp}')
        A(f'v_cmp_ne_u32 vcc, 0, v{tmp}')
        if sleep:
            A(f's_cbranch_vccz {E}\ns_sleep {sleep}\ns_branch {L}')
        else:
            A.raw('    s_cbranch_vccnz ' + L)
        A.label(E)
        cold.append((X, Y, E, net))
    cold = []
    def gather(dst, n, vaddr, offs, tmp, full=False, th=0, mid=None, kind=2, sleep=0, net=False, extra=0, retry=None, phase=3):
        if abl & kind:
            if mid: A('s_waitcnt vmcnt(0)'); mid()
            return
        L = A.newlabel('Lpoll'); E = A.newlabel('Lpend')
        if phase & 1:
            for i in range(n): wsload(dst + 4 * i, vaddr, offs[i])
            if mid: mid()
            for i in range(n):
                A(f's_waitcnt vmcnt({n-1-i+extra})'); check(dst + 4 * i, i, tmp, full)
        if not phase & 2: return
        A(f's_mov_b32 s10, {POLL_LIMIT}')
        if phase == 2:
            L0 = A.newlabel('Lp0'); A(f's_branch {L0}')
        A.label(L)
        if n == 1:
            if th: A(f's_bcnt1_i32_b64 s8, {mk(0)}\ns_cmp_le_u32 s8, {th}')
            else: A(f's_cmp_eq_u64 {mk(0)}, 0')
            A(f's_cbranch_scc1 {E}')
        else:
            A(f's_or_b64 s[8:9], {mk(0)}, {mk(1)}')
            for i in range(2, n): A(f's_or_b64 s[8:9], s[8:9], {mk(i)}')
            A(f's_cbranch_scc0 {E}')
        A('s_sub_u32 s10, s10, 1')
        A(f's_cbranch_scc1 {E}')
        if retry: retry()
        if sleep: A(f's_sleep {sleep}')
        if net:
            Nn = A.newlabel('Lnet')
            A(f's_and_b32 s8, s10, {NET-1}\ns_cbranch_scc1 {Nn}')
            A('s_mov_b64 exec, -1\nbuffer_wbl2 sc1\ns_waitcnt vmcnt(0)\nbuffer_inv sc1\ns_waitcnt vmcnt(0)')
            A.label(Nn)
        if phase == 2: A.label(L0)
        for i in range(n):
            A(f's_mov_b64 exec, {mk(i)}')
            if n > 1:
                S = A.newlabel('Lsk'); A(f's_cbranch_execz {S}')
            wsload(dst + 4 * i, vaddr, offs[i])
            if n > 1: A.label(S)
        if phase == 2 and mid: mid()
        A('s_waitcnt vmcnt(0)')
        for i in range(n):
            if n > 1:
                S = A.newlabel('Lsk'); A(f's_mov_b64 exec, {mk(i)}'); A(f's_cbranch_execz {S}')
            check(dst + 4 * i, i, tmp, full)
            if n > 1: A.label(S)
        A(f's_branch {L}')
        A.label(E)
        A('s_mov_b64 exec, -1')
    def lds_spin(off, val, vt, sleep=1):
        L = A.newlabel('Lspin'); E = A.newlabel('Lspe')
        A(f's_mov_b32 s10, {POLL_LIMIT*20}\nv_mov_b32 v{vt+1}, 0')
        A.label(L)
        A(f'ds_read_b32 v{vt}, v{vt+1} offset:{off}')
        A('s_waitcnt lgkmcnt(0)')
        A(f'v_readfirstlane_b32 s11, v{vt}')
        A(f's_cmp_ge_u32 s11, {val}')
        A(f's_cbranch_scc1 {E}')
        if sleep: A(f's_sleep {sleep}')
        A('s_sub_u32 s10, s10, 1')
        A(f's_cbranch_scc0 {L}')
        A.label(E)
    def lds_inc(off, vt, rtn=False):
        A(f'v_mov_b32 v{vt}, 0\nv_mov_b32 v{vt+1}, 1')
        A('s_waitcnt lgkmcnt(0)')
        A('s_mov_b64 exec, 1')
        if rtn: A(f'ds_add_rtn_u32 v{vt+1}, v{vt}, v{vt+1} offset:{off}')
        else: A(f'ds_add_u32 v{vt}, v{vt+1} offset:{off}')
        A('s_mov_b64 exec, -1')
        if rtn:
            A('s_waitcnt lgkmcnt(0)')
            A(f'v_readfirstlane_b32 s4, v{vt+1}')
    def tile_loads(dst, vaddr, srd, stride, row0=0, rng=range(8)):
        for i in rng:
            o = (row0 + i) * stride
            if o: A(f's_mov_b32 s11, {o}')
            A(f'buffer_load_dwordx4 {v(dst+4*i,4)}, v{vaddr}, {srd}, {"s11" if o else "0"} offen nt')
    def perm_pair(f0, f1, raw, t):
        for b in range(4):
            X = raw + 8 * b + t; Y = X + 4
            A(f'v_perm_b32 v{f0+b}, v{Y}, v{X}, s12')
            A(f'v_perm_b32 v{f1+b}, v{Y}, v{X}, s13')
    def perm_all(dst, raw):
        for t in range(4): perm_pair(dst + 8 * t, dst + 8 * t + 4, raw, t)
    def mfma(acc, a, b, first):
        A(f'v_mfma_f32_16x16x32_bf16 {v(acc,4)}, {v(a,4)}, {v(b,4)}, {"0" if first else v(acc,4)}')
    def select_out(dst, acc):
        for k in range(4): A(f'v_cndmask_b32 v{dst+k}, v{acc+4*k}, v{acc+16+4*k}, s[14:15]')
    stid = [0]
    def wsstore(r, vaddr, soff='0', fl='sc1'):
        stid[0] += 1
        if abl & 32 or (nost >> (stid[0] - 1)) & 1: return
        A(f'buffer_store_dwordx4 {v(r,4)}, v{vaddr}, s[44:47], {soff} offen {fl}')
    def locstore(r, vaddr, soff='0'):
        if not loc: return wsstore(r, vaddr, soff)
        L1 = A.newlabel('Lst'); L2 = A.newlabel('Lst')
        A(f's_cmp_lg_u32 s67, 0\ns_cbranch_scc1 {L1}')
        wsstore(r, vaddr, soff, '')
        A(f's_branch {L2}')
        A.label(L1)
        wsstore(r, vaddr, soff)
        A.label(L2)
    def tags():
        A('s_add_u32 s60, s60, 0x01010101')
        A('s_and_b32 s56, s60, 0xff\ns_bfe_u32 s57, s60, 0x80008\ns_bfe_u32 s58, s60, 0x80010\ns_lshr_b32 s59, s60, 24')
    def srd(n, base, size):
        A(f's_mov_b32 s{n}, s{base}\ns_mov_b32 s{n+1}, s{base+1}\ns_mov_b32 s{n+2}, {size}\ns_mov_b32 s{n+3}, 0x20000')
    G_ = ('s2', 0, 3); C_ = ('s2', 3, 5); CW = ('s3', 0, 2)
    T_ = lambda f, m: f + (m,)

    A('s_cmp_ge_u32 s2, 256\ns_cbranch_scc1 L_end')
    A('s_load_dwordx16 s[16:31], s[0:1], 0')
    A('s_load_dwordx8 s[32:39], s[0:1], 64')
    A('s_load_dwordx2 s[40:41], s[0:1], 96')
    A('s_load_dwordx2 s[42:43], s[0:1], 112')
    if stamps or hold: A('s_memrealtime s[70:71]')
    A('v_lshrrev_b32 v1, 6, v0')
    A('v_and_b32 v0, 63, v0')
    A('v_readfirstlane_b32 s3, v1')
    A('s_mov_b32 s12, 0x05040100\ns_mov_b32 s13, 0x07060302')
    A('s_cmp_lt_u32 s3, 4')
    A('s_cbranch_scc1 L_ctrl')

    KB = 40; QF = 4; CT = 12; S = 20; T = 36; OA = 136
    USTEP = (1 << 20) if GRP else 32768
    A('s_setprio 1')
    if cpf0:
        A('s_cmp_lg_u32 s3, 4\ns_cbranch_scc1 L_cp0')
        A('s_getpc_b64 s[8:9]')
        A.label('L_pc0')
        A(f's_lshr_b32 s4, s2, 3\ns_lshl_b32 s4, s4, 10\ns_min_u32 s4, s4, L_codeend-L_pc0-1024\nv_lshlrev_b32 v4, 4, v0\nv_add_u32 v4, s4, v4')
        A('global_load_dwordx4 v[32:35], v4, s[8:9]')
        A.label('L_cp0')
    addr(1, [(1, 1, 1024), (2, 2, 256), (4, 2, 32), (0, 1, 16)], tmp=4)
    A('v_lshlrev_b32 v2, 4, v0')
    addr(39, [(1, 3, 256), (4, 2, 32), (0, 1, 16)], tmp=4)
    A('s_sub_u32 s6, s3, 4')
    sexpr('s4', [T_(G_, 1 << 23), T_(C_, 32768 if GRP else 262144), ('s6', 0, 3, 4096)])
    A(f's_lshr_b32 s61, s2, 3\ns_mul_i32 s61, s61, {ROT*USTEP}\ns_and_b32 s61, s61, {8*USTEP-1}')
    A(f's_sub_u32 s5, {64<<20}, s4')
    A('s_mov_b32 s14, 0xaaaaaaaa\ns_mov_b32 s15, 0xaaaaaaaa')
    A('v_mov_b32 v3, 0xffff\nv_mov_b32 v9, 0xffff0000\nv_cndmask_b32 v3, v3, v9, s[14:15]')
    A('s_waitcnt lgkmcnt(0)')
    if stamps: A(f's_mov_b32 s{SB}, s70')
    A('s_add_u32 s48, s18, s4\ns_addc_u32 s49, s19, 0\ns_mov_b32 s50, s5\ns_mov_b32 s51, 0x20000')
    A('s_add_u32 s52, s20, s4\ns_addc_u32 s53, s21, 0\ns_mov_b32 s54, s5\ns_mov_b32 s55, 0x20000')
    issued = [0]; nv = [0]
    def wait_load(k): A(f's_waitcnt vmcnt({max(issued[0] - 1 - k, 0)})')
    def unit(n):
        if n % 4 == 0:
            A('s_mov_b32 s7, s61' if n == 0 else f's_add_u32 s7, s7, {USTEP}\ns_and_b32 s7, s7, {8*USTEP-1}')
    def kload(n):
        if issued[0] >= D1: A(f's_waitcnt vmcnt({D1-1})')
        unit(n); j = n % 4
        A(f'buffer_load_dwordx4 {v(KB+4*n,4)}, v1, s[48:51], s7 offen offset:{(j>>1)*2048+(j&1)*128} nt')
        issued[0] += 1
        if n == TH_: lds_inc(C_T1, T)
        if n == TQ: lds_inc(C_T2, T)
    def vslot(n): return KB + 4 * (n % 24)
    def dcur(): return D3 if nv[0] >= N3 else D2
    def vload():
        n = nv[0]
        A(f's_waitcnt vmcnt({dcur()-1})')
        unit(n)
        if n < NL:
            if n % 4 == 0: A(f's_add_u32 m0, s62, {n*1024}')
            A(f'buffer_load_dwordx4 v2, s[52:55], s7 offen offset:{(n%4)*1024} nt lds')
        else:
            A(f'buffer_load_dwordx4 {v(vslot(n),4)}, v2, s[52:55], s7 offen offset:{(n%4)*1024} nt')
        issued[0] += 1; nv[0] += 1
        if n + 32 == TQ: lds_inc(C_T2, T)
        if n == WOAT: lds_inc(C_WO, T)
        if n == STAT: lds_inc(C_V, T)
        if n == PREAT: lds_inc(C_XS, T)
    if tlb:
        A('s_cmp_lg_u32 s3, 5\ns_cbranch_scc1 L_tl0')
        A('s_mov_b64 exec, 1\nv_mov_b32 v4, 0')
        A('buffer_load_dword v32, v4, s[52:55], 0 offen nt')
        A('global_load_dword v33, v4, s[40:41]')
        A(f'v_mov_b32 v5, {0x100000}\nglobal_load_dword v34, v5, s[42:43]\nv_mov_b32 v6, {0x220000}\nglobal_load_dword v35, v6, s[42:43]')
        sexpr('s4', [T_(G_, 4 * 128 * 2048), ('s2', 3, 2, 128 * 2048)])
        A('v_mov_b32 v7, s4\nglobal_load_dword v31, v7, s[24:25] nt')
        sexpr('s4', [('s2', 4, 3, 128 * 12288)])
        A('v_mov_b32 v8, s4\nglobal_load_dword v30, v8, s[38:39] nt')
        A(f'v_add_u32 v8, {127*12288}, v8\nglobal_load_dword v29, v8, s[38:39] nt')
        A('global_load_ushort v28, v4, s[34:35]')
        A('s_mov_b64 exec, -1')
        A.label('L_tl0')
    stamp(5)
    for n in range(K0): kload(n)
    A('s_barrier')
    stamp(6)
    A(f's_mul_i32 s62, s6, {NL*1024}\ns_add_u32 s62, s62, {LV}')
    for n in range(K0, 32):
        kload(n)
        if n == D1: stamp(7)
    for n in range(NL): vload()
    stamp(1)
    lds_spin(C_Q, 4, 4)
    stamp(2)
    A(f'ds_read_b128 {v(QF,4)}, v39 offset:{LQ}')
    A(f'ds_read_b128 {v(QF+4,4)}, v39 offset:{LQ+128}')
    A('s_waitcnt lgkmcnt(0)')
    def qk_fin(b):
        c = CT + 4 * (b & 1)
        A(f'v_cndmask_b32 v{T}, v{c+2}, v{c+1}, s[14:15]')
        A(f'v_cndmask_b32 v{S+b}, v{c}, v{c+3}, s[14:15]')
        A(f'v_add_f32_dpp v{S+b}, v{T}, v{S+b} {X1_} {MK}')
    for b in range(16):
        if 2 * b + 1 > 31 + NL - max(D1, D2): wait_load(2 * b + 1)
        c = CT + 4 * (b & 1)
        mfma(c, KB + 8 * b, QF, True)
        mfma(c, KB + 8 * b + 4, QF + 4, False)
        if b >= 1: qk_fin(b - 1)
        if b - NL // 2 in (0, 1, 2) or b == 13: vload()
    qk_fin(15)
    A(f's_mov_b32 s4, {hx(f2u(128 ** -0.5))}')
    for i in range(0, 16, 2):
        rnd2(S + i, S + i + 1, T + (i // 2) % 2)
        A(f'v_mul_f32 v{S+i}, s4, v{S+i}\nv_mul_f32 v{S+i+1}, s4, v{S+i+1}')
        rnd2(S + i, S + i + 1, T + 2 + (i // 2) % 2)
    M = 12; Lr = 13
    A(f'v_max3_f32 v{M}, v{S}, v{S+1}, v{S+2}')
    for i in range(3, 15, 2): A(f'v_max3_f32 v{M}, v{M}, v{S+i}, v{S+i+1}')
    A(f'v_max_f32 v{M}, v{M}, v{S+15}')
    red('v_max_f32', [M], [X1_, 'p16', 'p32'], [T])
    vload()
    A(f's_mov_b32 s4, {hx(f2u(LOG2E))}')
    A(f'v_mul_f32 v14, s4, v{M}')
    for i in range(16): A(f'v_fma_f32 v{S+i}, v{S+i}, s4, -v14')
    for i in range(16): A(f'v_exp_f32 v{S+i}, v{S+i}')
    A(f'v_add_f32 v{Lr}, v{S}, v{S+1}')
    for i in range(2, 16): A(f'v_add_f32 v{Lr}, v{Lr}, v{S+i}')
    for i in range(16): A(f'v_cvt_pk_bf16_f32 v{S+i}, v{S+i}, v{S+i}')
    for i in range(16): A(f'v_and_b32 v{S+i}, v3, v{S+i}')
    red('v_add_f32', [Lr], [X1_, 'p16', 'p32'], [T])
    addr(14, [(0, 6, 4)], [('s6', 0, 3, 64)])
    A('s_mov_b64 exec, 0x5555')
    A(f'ds_write_b64 v14, v[{M}:{Lr}] offset:{LST}')
    A('s_mov_b64 exec, -1')
    vload()
    lds_inc(C_ST, T)
    stamp(3)
    PT = 4
    if NL:
        wait_load(32 + NL - 1)
        A('v_add_u32 v4, s62, v2')
        for n in range(NL): A(f'ds_read_b128 {v(vslot(n),4)}, v4 offset:{n*1024}')
        A('s_waitcnt lgkmcnt(0)')
    for tau in range(4):
        raw = vslot(8 * tau)
        if tau < 3:
            lim = min(32, 8 * tau + 24)
            while nv[0] < lim and (issued[0] - 1 - (32 + 8 * tau + 7)) < dcur(): vload()
            wait_load(32 + 8 * tau + 7)
            for t in range(4):
                f0 = PT + 8 * (t & 1); f1 = f0 + 4
                perm_pair(f0, f1, raw, t)
                mfma(OA + 8 * t, S + 4 * tau, f0, tau == 0)
                mfma(OA + 8 * t + 4, S + 4 * tau, f1, tau == 0)
        else:
            while nv[0] < 32: vload()
            addr(4, [(4, 2, 1024), (0, 4, 16)], [('s6', 0, 3, NL * 1024)], LV, tmp=5)
            FB = vslot(8)
            for b in range(4):
                wait_load(32 + 24 + 2 * b + 1)
                for t in range(4):
                    X = raw + 8 * b + t; Y = X + 4
                    A(f'v_perm_b32 v{FB+8*t+b}, v{Y}, v{X}, s12')
                    A(f'v_perm_b32 v{FB+8*t+4+b}, v{Y}, v{X}, s13')
            for n in range(8): mfma(OA + 4 * n, S + 12, FB + 4 * n, False)
    W = 40
    for hq in range(2):
        for n in range(4 * hq, 4 * hq + 4):
            A(f'v_add_f32 v{W+n}, v{OA+4*n}, v{OA+4*n+1}')
            A(f'v_add_f32 v{W+8+n}, v{OA+4*n+2}, v{OA+4*n+3}')
        A(f'ds_write_b128 v4, {v(W+4*hq,4)} offset:{256*hq}')
        A(f'ds_write_b128 v4, {v(W+8+4*hq,4)} offset:{512+256*hq}')
    A('s_waitcnt lgkmcnt(0)')
    stamp(4)
    A('s_barrier')
    A('s_and_b32 s4, s2, 7\ns_cmp_ge_u32 s4, 2\ns_cbranch_scc1 L_s9')
    A('s_cmp_ge_u32 s6, 3\ns_cbranch_scc1 L_s9')
    A('s_load_dword s60, s[42:43], 0')
    srd(44, 42, WS_USED)
    A(f'v_mov_b32 v3, 0xff\ns_mul_i32 s4, s6, 7168\ns_min_u32 s4, s4, {NB*1024-7168}\nv_add_u32 v4, s4, v2\nv_add_u32 v6, {TB}, v4')
    A('s_waitcnt lgkmcnt(0)')
    tags()
    gather(104, 7, 6, [1024 * i for i in range(7)], 5)
    for i in range(7): A(f'ds_write_b128 v4, {v(104+4*i,4)} offset:{LT+1024*i}')
    lds_inc(C_PL, 8)
    A.label('L_s9')
    stamp_flush(8)
    A('s_endpgm')

    A.label('L_ctrl')
    A('s_setprio 3')
    A('v_mov_b32 v3, 0xff')
    HI = (4, 2); LOf = (0, 4)
    CF = 4; PTc = 24; GR = 104; BF = 136; AC2 = 104
    def silu(src, n, dst, tmp):
        A(f's_mov_b32 s4, {hx(f2u(-LOG2E))}')
        m = 2 * n
        for r in range(n): A(f'v_lshlrev_b32 v{tmp+m+2*r}, 16, v{src+r}\nv_and_b32 v{tmp+m+2*r+1}, 0xffff0000, v{src+r}')
        for r in range(m): A(f'v_mul_f32 v{tmp+r}, s4, v{tmp+m+r}')
        for r in range(m): A(f'v_exp_f32 v{tmp+r}, v{tmp+r}')
        for r in range(m): A(f'v_add_f32 v{tmp+r}, 1.0, v{tmp+r}')
        for r in range(m): A(f'v_rcp_f32 v{tmp+r}, v{tmp+r}')
        for r in range(m): A(f'v_mul_f32 v{tmp+r}, v{tmp+r}, v{tmp+m+r}')
        for r in range(n): A(f'v_cvt_pk_bf16_f32 v{dst+r}, v{tmp+2*r}, v{tmp+2*r+1}')
    def tile_mfma(raw, a, AC, first):
        for t in range(4):
            f0 = PTc + 8 * (t & 1); f1 = f0 + 4
            perm_pair(f0, f1, raw, t)
            mfma(AC + 8 * t, a, f0, first)
            mfma(AC + 8 * t + 4, a, f1, first)
    def sigma(a):
        rnd2(a, a + 1, a + 2)
        A(f'v_add_f32 v{a+1}, {hx(f2u(1e-5))}, v{a+1}')
        rnd1(a + 1)
        A(f'v_sqrt_f32 v{a+1}, v{a+1}')
        rnd1(a + 1)
        A(f'v_rcp_f32 v{a+1}, v{a+1}')
    def sumn(dst, n, src=GR):
        for k in range(4): A(f'v_add_f32 v{dst+k}, v{src+k}, v{src+4+k}')
        for i in range(2, n):
            for k in range(4): A(f'v_add_f32 v{dst+k}, v{dst+k}, v{src+4*i+k}')
    def afrag(lo2):
        for k in range(4): A(f'v_mov_b32_dpp v{4+k}, v{lo2+(k&1)} quad_perm:{"[0,0,2,2]" if k < 2 else "[1,1,3,3]"} {MK}')
    def red4_publish(vaddr, lr, rnd=True, fl='sc1'):
        for i in range(4): A(f'ds_read_b128 {v(GR+4*i,4)}, v18 offset:{lr+1024*i}')
        A('s_waitcnt lgkmcnt(0)')
        for k in range(4): A(f'v_add_f32 v{4+k}, v{GR+k}, v{GR+4+k}\nv_add_f32 v{8+k}, v{GR+8+k}, v{GR+12+k}')
        for k in range(4): A(f'v_add_f32 v{4+k}, v{4+k}, v{8+k}')
        embed(8, [4, 5, 6, 7], rnd)
        wsstore(8, vaddr, fl=fl)
    TW = 40; TR = 72; TC = 96; TA = 102; TU = 104; TE = 118
    def tab_load(sidx):
        A(f's_mul_i32 s4, {sidx}, 1792\nv_mul_u32_u24 v4, 28, v0\nv_add_u32 v4, s4, v4')
        for a_, sp in enumerate(('s[28:29]', 's[30:31]', 's[32:33]')):
            A(f'global_load_dwordx4 {v(TR+8*a_,4)}, v4, {sp}')
            A(f'global_load_dwordx3 {v(TR+8*a_+4,3)}, v4, {sp} offset:16')
    def tab_unpack():
        A('s_waitcnt vmcnt(0)')
        for a in range(3):
            for i in range(7):
                d = TW + 14 * a + 2 * i
                A(f'v_lshlrev_b32 v{d}, 16, v{TR+8*a+i}\nv_and_b32 v{d+1}, 0xffff0000, v{TR+8*a+i}')
        for i in range(7):
            A(f'v_pk_mul_f32 {v(TW+42+2*i,2)}, {v(TW+14+2*i,2)}, {v(TW+28+2*i,2)}')
            A(f'v_pk_mul_f32 {v(TW+28+2*i,2)}, {v(TW+2*i,2)}, {v(TW+28+2*i,2)}')
    ca = -2.0 * 0.7978845608028654 * LOG2E
    def tab_consts():
        A(f'v_mov_b32 v{TC}, {hx(f2u(ca))}\nv_mov_b32 v{TC+1}, {hx(f2u(ca))}')
        A(f'v_mov_b32 v{TC+2}, {hx(f2u(ca*0.044715))}\nv_mov_b32 v{TC+3}, {hx(f2u(ca*0.044715))}')
        A(f'v_mov_b32 v{TC+4}, 1.0\nv_mov_b32 v{TC+5}, 1.0')
    def tab_eval():
        P = lambda r: v(r, 2)
        for i in range(7): A(f'v_pk_fma_f32 {P(TU+2*i)}, {P(TW+2*i)}, s[64:65], {P(TW+14+2*i)}')
        for i in range(7): A(f'v_pk_mul_f32 {P(TE+2*i)}, {P(TU+2*i)}, {P(TU+2*i)}')
        for i in range(7): A(f'v_pk_fma_f32 {P(TE+2*i)}, {P(TE+2*i)}, {P(TC+2)}, {P(TC)}')
        for i in range(7): A(f'v_pk_mul_f32 {P(TE+2*i)}, {P(TE+2*i)}, {P(TU+2*i)}')
        for i in range(14): A(f'v_exp_f32 v{TE+i}, v{TE+i}')
        for i in range(7): A(f'v_pk_fma_f32 {P(TU+2*i)}, {P(TW+28+2*i)}, s[64:65], {P(TW+42+2*i)}')
        for i in range(7): A(f'v_pk_add_f32 {P(TE+2*i)}, {P(TE+2*i)}, {P(TC+4)}')
        for i in range(14): A(f'v_rcp_f32 v{TE+i}, v{TE+i}')
        A(f'v_pk_mul_f32 {P(TA)}, {P(TU)}, {P(TE)}')
        for i in range(1, 7): A(f'v_pk_fma_f32 {P(TA)}, {P(TU+2*i)}, {P(TE+2*i)}, {P(TA)}')
        A(f'v_add_f32 v{TA}, v{TA}, v{TA+1}')
    def tab_to(n, n0=None):
        if n0 is None: A(f's_mov_b32 s5, {n}')
        else: A(f's_cmp_eq_u32 s3, 0\ns_cselect_b32 s5, {n0}, {n}')
        A('s_call_b64 s[68:69], L_tab')
    def pack_afrag(r):
        A(f'v_perm_b32 v12, v{r+1}, v{r}, s13\nv_perm_b32 v13, v{r+3}, v{r+2}, s13')
        afrag(12)
    def embed_bf(dst, srcs):
        for k, s_ in enumerate(srcs): A(f'v_or_b32 v{dst+k}, s{56+k}, v{s_}')
    CG = ('s2', 0, 4); RG = ('s2', 4, 4)
    addr(12, [HI + (8 * 12288,), LOf + (16,)], [T_(RG, 64 * 12288), T_(CG, 256)], tmp=15)
    addr(13, [(2, 1, 2048), HI + (16,)], [T_(RG, 128)], tmp=15)
    A(f'v_mov_b32 v14, 0\nv_lshlrev_b32 v15, 2, v0\ns_mov_b64 exec, 0xffff\nds_write_b32 v15, v14 offset:{LCNT}\ns_mov_b64 exec, -1')
    addr(14, [HI + (8 * 8192,), LOf + (16,)], [('s2', 5, 3, 128 * 8192), T_(CW, 32 * 8192), T_(G_, 1024), ('s2', 3, 2, 256)], tmp=16)
    A('v_lshlrev_b32 v18, 4, v0')
    A('s_cmp_lt_u32 s2, 64\ns_cselect_b32 s67, s3, 0')
    A('s_waitcnt lgkmcnt(0)')
    if stamps: A(f's_mov_b32 s{SB}, s70')
    srd(48, 38, 12 << 20)
    A('s_cmp_lg_u32 s3, 0\ns_cbranch_scc1 L_c0')
    A(f'global_load_dwordx4 {v(CF,4)}, v13, s[36:37]')
    A(f'global_load_dwordx4 {v(CF+4,4)}, v13, s[36:37] offset:64')
    tile_loads(40, 12, 's[48:51]', 12288, 0)
    tile_loads(136, 12, 's[48:51]', 12288, 32)
    A.label('L_c0')
    XR = 40
    RB = ('s2', 3, 1); RD = ('s2', 4, 2)
    A('s_cmp_lg_u32 s67, 1\ns_cbranch_scc1 L_c1')
    addr(15, [(0, 6, 16)], [T_(RB, 2048)])
    for i in range(2): A(f'global_load_dwordx4 {v(XR+4*i,4)}, v15, s[16:17] offset:{1024*i}')
    addr(15, [(0, 3, 8)], [T_(RB, 2048), T_(G_, 256), T_(RD, 64)], tmp=16)
    A(f'global_load_dwordx2 {v(XR+8,2)}, v15, s[16:17]')
    A.label('L_c1')
    if B0e: A('s_barrier')
    A('s_load_dword s60, s[42:43], 0')
    srd(52, 22, 8 << 20)
    tile_loads(GR, 14, 's[52:55]', 8192)
    if not B0e: A('s_barrier')
    A('s_mov_b32 s14, 0\ns_mov_b32 s15, -1')
    srd(44, 42, WS_USED)
    addr(16, [(4, 1, 512), LOf + (32,), (5, 1, 16)], tmp=15)
    A('s_lshl_b32 s4, s3, 10\nv_add_u32 v19, s4, v18')
    A(f's_and_b32 s4, s2, 127\ns_mul_i32 s4, s4, {NB}\ns_add_u32 s4, s4, {E0*128}\ns_lshl_b32 s4, s4, 16\ns_lshr_b32 s5, s2, 7\ns_lshl_b32 s5, s5, 31\ns_or_b32 s64, s4, s5')
    A('s_lshl_b32 s6, s3, 4\ns_mov_b32 s66, 0')
    A('s_waitcnt lgkmcnt(0)')
    tags()
    A('s_cmp_lg_u32 s3, 0\ns_cbranch_scc1 L_c2')
    A('s_waitcnt vmcnt(24)')
    silu(CF, 8, CF, 72)
    sexpr('s4', [T_(CG, 16 * SL), T_(RG, SL)], MODP)
    A('v_add_u32 v12, s4, v16')
    A('s_waitcnt vmcnt(16)')
    tile_mfma(40, CF, 72, True)
    A('s_waitcnt vmcnt(8)')
    tile_mfma(136, CF + 4, 72, False)
    select_out(PTc, 72)
    embed(PTc + 4, range(PTc, PTc + 4))
    wsstore(PTc + 4, 12, fl=LOC)
    A.label('L_c2')
    stamp(1)
    tab_load('s3')
    A('s_cmp_lg_u32 s67, 1\ns_cbranch_scc1 L_c2b')
    A('s_waitcnt vmcnt(14)')
    XU = 136; LN = 20
    for r in range(8): A(f'v_lshlrev_b32 v{XU+2*r}, 16, v{XR+r}\nv_and_b32 v{XU+2*r+1}, 0xffff0000, v{XR+r}')
    st6 = [X1_, X2_, HM, RM, 'p16', 'p32']
    A(f'v_add_f32 v4, v{XU}, v{XU+1}')
    for i in range(2, 16): A(f'v_add_f32 v4, v4, v{XU+i}')
    red('v_add_f32', [4], st6, [6])
    A(f'v_mul_f32 v4, {hx(f2u(1.0/1024))}, v4')
    A(f'v_sub_f32 v6, v{XU}, v4\nv_mul_f32 v5, v6, v6')
    for i in range(1, 16): A(f'v_sub_f32 v{6+(i&1)}, v{XU+i}, v4\nv_fmac_f32 v5, v{6+(i&1)}, v{6+(i&1)}')
    red('v_add_f32', [5], st6, [6])
    A(f'v_mul_f32 v5, {hx(f2u(1.0/1024))}, v5')
    sigma(4)
    A(f'v_lshlrev_b32 v20, 16, v{XR+8}\nv_and_b32 v21, 0xffff0000, v{XR+8}\nv_lshlrev_b32 v22, 16, v{XR+9}\nv_and_b32 v23, 0xffff0000, v{XR+9}')
    for k in range(4): A(f'v_sub_f32 v{LN+k}, v{LN+k}, v4')
    rnd2(LN, LN + 1, 6); rnd2(LN + 2, LN + 3, 7)
    for k in range(4): A(f'v_mul_f32 v{LN+k}, v{LN+k}, v5')
    rnd2(LN, LN + 1, 6); rnd2(LN + 2, LN + 3, 7)
    A.label('L_c2b')
    A('s_waitcnt vmcnt(6)')
    perm_all(BF, GR)
    tab_unpack(); tab_consts()
    A('s_cmp_lg_u32 s67, 1\ns_cbranch_scc1 L_c2d')
    addr(4, [(5, 1, 128 * SL), (3, 2, SL), (0, 3, 16)], [T_(G_, 16 * SL), T_(RB, 512), T_(RD, 128)], MODP, tmp=5)
    if r1st == 1: stamp(7)
    gather(GR, 4, 4, [4 * SL * i for i in range(4)], 5, kind=1, net=True)
    if r1st == 1: stamp(8)
    sumn(4, 4)
    red('v_add_f32', [4, 5, 6, 7], [R8, 'p16'], [8, 9, 10, 11])
    rnd2(4, 5, 8); rnd2(6, 7, 9)
    for k in range(4): A(f'v_mov_b32 v{8+k}, v{4+k}')
    for k in range(4): A(f'v_permlane32_swap_b32 v{4+k}, v{8+k}')
    for k in range(4): A(f'v_add_f32 v{8+k}, 1.0, v{8+k}')
    rnd2(8, 9, 13); rnd2(10, 11, 14)
    for k in range(4): A(f'v_mul_f32 v{8+k}, v{8+k}, v{LN+k}')
    rnd2(8, 9, 13); rnd2(10, 11, 14)
    for k in range(4): A(f'v_add_f32 v{8+k}, v{4+k}, v{8+k}')
    rnd2(8, 9, 13); rnd2(10, 11, 14)
    embed_bf(8, [8, 9, 10, 11])
    addr(4, [(0, 6, 16)], [T_(G_, 1024), T_(RB, 512), T_(RD, 128)], HR)
    A('s_mov_b64 exec, 0xff')
    wsstore(8, 4)
    A('s_mov_b64 exec, -1')
    A('s_branch L_c2c')
    A.label('L_c2d')
    tab_to(N1, N10)
    A.label('L_c2c')
    addr(4, [(2, 1, 512), HI + (32,), (0, 1, 16)], [('s2', 5, 3, 1024), T_(CW, 128)], HR, tmp=5)
    if TH_ < 99: lds_spin(C_T1, TGC, 6, sleep=2)
    stamp(2)
    gather(GR, 1, 4, [0], 5, kind=1, net=True)
    stamp(3)
    pack_afrag(GR)
    for n in range(8): mfma(AC2 + 4 * n, 4, BF + 4 * n, True)
    sexpr('s4', [('s2', 0, 8, SL)], QP)
    A('v_add_u32 v14, s4, v16')
    select_out(8, AC2)
    A(f'ds_write_b128 v19, v[8:11] offset:{LRED}')
    lds_inc(C_P2, 12, rtn=True)
    A('s_cmp_lg_u32 s4, 3\ns_cbranch_scc1 L_c3')
    red4_publish(14, LRED, fl=LOC)
    A.label('L_c3')
    stamp(4)
    RG8 = ('s2', 4, 3); CT_ = ('s2', 7, 1)
    addr(12, [HI + (8 * 12288,), LOf + (16,)], [T_(RG8, 128 * 12288), T_(CW, 32 * 12288), T_(CT_, 4096), T_(CG, 256)], 4096, tmp=15)
    addr(13, [(2, 1, 2048), HI + (16,)], [T_(RG8, 256), T_(CW, 64)], tmp=15)
    A('global_load_dwordx4 v[20:23], v13, s[36:37]')
    tile_loads(BF, 12, 's[48:51]', 12288, 0)
    tab_to(N2)
    def line_reduce_store(vgaddr, offs, base, fl, GR=GR, **kw):
        n = len(offs)
        gather(GR, n, vgaddr, offs, 5, **kw)
        if n > 1 and r1st == 3:
            stamp(7)
            A(f's_sub_u32 s4, {POLL_LIMIT}, s10\ns_mul_i32 s4, s4, 100\ns_add_u32 s{SB+8}, s{SB+9}, s4')
        if n > 1: sumn(GR, n, GR)
        red('v_add_f32', [GR, GR + 1, GR + 2, GR + 3], [R8, 'p16', 'p32'], [8, 9, 10, 11])
        rnd2(GR, GR + 1, 8); rnd2(GR + 2, GR + 3, 9)
        embed_bf(8, [GR, GR + 1, GR + 2, GR + 3])
        A(f's_mov_b32 s7, {base}\ns_mov_b64 exec, 0xff')
        wsstore(8, 17, 's7', fl)
        A('s_mov_b64 exec, -1')
    addr(17, [(0, 6, 16)], [('s2', 7, 1, 16384), T_(G_, 2048), ('s2', 3, 4, 128)])
    A('s_cmp_lg_u32 s3, 2\ns_cbranch_scc1 L_r2')
    addr(4, [(3, 3, 32 * SL), (0, 3, 16)], [T_(G_, SL), ('s2', 5, 2, 8 * SL), ('s2', 7, 1, 512), ('s2', 3, 2, 128)], QP, tmp=5)
    line_reduce_store(4, [0], Q2, 'sc1', kind=1, net=True)
    A.label('L_r2')
    A('s_waitcnt vmcnt(0)')
    silu(20, 4, CF, GR)
    tile_mfma(BF, CF, GR, True)
    select_out(8, GR)
    A(f'ds_write_b128 v19, v[8:11] offset:{LRED2}')
    tab_to(NB)
    if TQ < 99: lds_spin(C_T2, TGC, 6, sleep=2)
    sexpr('s4', [T_(G_, 4096)], Q2)
    A('v_add_u32 v4, s4, v19')
    stamp(5)
    gather(GR, 1, 4, [0], 5, kind=1, net=True)
    A(f'v_perm_b32 v4, v{GR+1}, v{GR}, s13\nv_perm_b32 v5, v{GR+3}, v{GR+2}, s13')
    A('v_lshrrev_b32 v6, 1, v19')
    A(f'ds_write_b64 v6, v[4:5] offset:{LQ}')
    lds_inc(C_Q, 8)
    stamp(6)
    lds_inc(C_TB, 4, rtn=True)
    A('s_cmp_lg_u32 s4, 3\ns_cbranch_scc1 L_c3d')
    A(f's_mov_b64 exec, {(1 << (NB//4)) - 1}')
    A('v_lshlrev_b32 v4, 8, v0')
    for i in range(16): A(f'ds_read_b128 {v(40+4*i,4)}, v4 offset:{LTP+16*i}')
    A(f's_mul_i32 s4, s2, {NB*4}\ns_add_u32 s4, s4, {TB}\nv_add_u32 v12, s4, v18')
    A('s_waitcnt lgkmcnt(0)')
    for k in range(4):
        A(f'v_add_f32 v{4+k}, v{40+16*k}, v{41+16*k}')
        for i in range(2, 16): A(f'v_add_f32 v{4+k}, v{4+k}, v{40+16*k+i}')
    embed(8, [4, 5, 6, 7])
    wsstore(8, 12)
    A('s_mov_b64 exec, -1')
    A.label('L_c3d')
    if not r1st: stamp(7)
    W2R = 40; BF = 72; AC2 = 40
    if cpf:
        A('s_cmp_lg_u32 s3, 2\ns_cbranch_scc1 L_cpf')
        A('s_getpc_b64 s[8:9]')
        A.label('L_pc')
        A(f's_lshr_b32 s4, s2, 3\ns_and_b32 s4, s4, 15\ns_lshl_b32 s4, s4, 10\ns_min_u32 s4, s4, L_codeend-L_pc-1024\nv_add_u32 v4, s4, v18')
        A('global_load_dwordx4 v[144:147], v4, s[8:9]')
        A.label('L_cpf')
    HH = lambda m: [T_(G_, 4 * m), ('s2', 3, 2, m)]
    CC = ('s2', 5, 3); GG = ('s2', 1, 2)
    HL = lambda m: [('s2', 0, 1, 4 * m), ('s2', 3, 2, m)]
    B_ = ('s2', 0, 1)
    srd(52, 24, 8 << 20)
    addr(33, [HI + (8 * 2048,), LOf + (16,)], HH(128 * 2048) + [T_(CW, 32 * 2048), T_(CC, 256)], tmp=4)
    addr(27, [(5, 1, 512), LOf + (32,), (4, 1, 16)], [T_(G_, 32 * SL), T_(C_, SL), T_(CW, 1024)], OP, tmp=4)
    addr(28, [(5, 1, 32)], [T_(CW, 64)], tmp=4)
    addr(31, [(1, 5, SL), (0, 1, 16)], [T_(G_, 32 * SL), T_(C_, 128), T_(CW, 32)], OP, tmp=4)
    addr(29, [(2, 1, 512 * OST), HI + (OST,), (0, 1, 16)], [T_(GG, 128 * OST)] + HL(16 * OST) + [T_(CW, 4 * OST)], O2, tmp=4)
    addr(17, [(0, 3, 16), (5, 1, 8)], [T_(G_, 128 * OST), T_(C_, 4 * OST), T_(CW, OST)], O2, tmp=4)
    sexpr('s4', HH(8 * SL) + [T_(CC, SL)], AP)
    A('v_add_u32 v30, s4, v16')
    sexpr('s4', [T_(CT_, 128 * SL), T_(CG, 8 * SL), T_(RG8, SL)], MODR)
    A('v_add_u32 v32, s4, v16')
    addr(36, [(0, 3, 8), (4, 1, 4), (5, 1, 2)], [T_(B_, 2048), T_(C_, 64)], tmp=4)
    addr(26, [(5, 1, 16), (0, 2, 32)], [T_(B_, 4096), T_(C_, 128)], tmp=4)
    addr(37, [(5, 1, 16), (0, 5, 128)], [T_(B_, 4096)], tmp=4)
    addr(38, [(3, 3, 8 * SL), (0, 3, 16)], [T_(CC, SL), T_(B_, 512), ('s2', 3, 2, 128)], AP, tmp=4)
    addr(34, [(3, 3, SL), (0, 3, 16)], [T_(CC, 8 * SL), T_(B_, 512), ('s2', 3, 2, 128)], MODR, tmp=4)
    GA = 20; SBr = 21; Ur = 22; GB = 23; XO = 24; B2r = 25; CU = 48
    A('s_cmp_lg_u32 s3, 1\ns_cbranch_scc1 L_c4')
    A(f'global_load_ushort v{XO}, v36, s[16:17]')
    A(f'v_mov_b32 v7, 0\nglobal_load_ushort v{B2r}, v7, s[34:35]')
    A.label('L_c4')
    def sums_publish(r, base):
        tred(32, [(r, r + 3), (r + 1, r + 4), (r + 2, r + 5)])
        A(f'v_mov_b32 v{r+3}, s60')
        red('v_add_f32', [r, r + 1, r + 2], [X1_, X2_, HM])
        for j in range(3): A(f'v_add_f32_dpp v{r+j}, v{r+j}, v{r+j} row_bcast:15 row_mask:0xa bank_mask:0xf')
        A(f's_mov_b32 s7, {base}\ns_mov_b32 exec_lo, 0xf0000\ns_mov_b32 exec_hi, 0xf0000')
        locstore(r, 26, 's7')
        A('s_mov_b64 exec, -1')
    A('s_cmp_lg_u32 s3, 3\ns_cbranch_scc1 L_c5')
    lds_spin(C_ST, 8, 4, sleep=4)
    A(f'v_lshlrev_b32 v4, 3, v0\nds_read_b64 v[8:9], v4 offset:{LST}')
    A(f's_mov_b32 s7, {hx(f2u(LOG2E))}')
    A('s_waitcnt lgkmcnt(0)')
    A('v_mov_b32 v4, v8\nv_mov_b32 v39, v8')
    red('v_max_f32', [4], [R8, 'p16', 'p32'], [6])
    A('v_sub_f32 v5, v8, v4\nv_mul_f32 v5, s7, v5\nv_exp_f32 v5, v5\nv_mul_f32 v5, v5, v9')
    red('v_add_f32', [5], [R8, 'p16', 'p32'], [6])
    A('s_getreg_b32 s67, hwreg(HW_REG_XCC_ID, 0, 4)')
    A(f'v_mov_b32 v6, s67\nv_mov_b32 v7, s60')
    addr(12, [(0, 6, 16)], [T_(G_, 4096), T_(C_, 128)], ST)
    A('s_mov_b64 exec, 0xff')
    wsstore(4, 12, fl=LOC)
    A('s_mov_b64 exec, -1')
    addr(12, [(0, 6, 16)], [T_(G_, 4096)], ST)
    lds_spin(C_V, 8, 8, sleep=4)
    gather(GR, 4, 12, [1024 * i for i in range(4)], 8, full=True, net=True)
    for i in range(4): A(f'v_xor_b32 v{GR+4*i+2}, s67, v{GR+4*i+2}')
    A(f'v_or3_b32 v4, v{GR+2}, v{GR+6}, v{GR+10}\nv_or_b32 v4, v4, v{GR+14}\nv_cmp_ne_u32 vcc, 0, v4')
    A('s_or_b32 s4, vcc_lo, vcc_hi\nv_mov_b32 v4, s4\nv_mov_b32 v5, 0')
    A(f'ds_write_b32 v5, v4 offset:{C_H}')
    A(f'v_max3_f32 v4, v{GR}, v{GR+4}, v{GR+8}\nv_max_f32 v4, v4, v{GR+12}')
    red('v_max_f32', [4], [R8, 'p16', 'p32'], [6])
    for i in range(4): A(f'v_sub_f32 v{8+i}, v{GR+4*i}, v4')
    for i in range(4): A(f'v_mul_f32 v{8+i}, s7, v{8+i}')
    for i in range(4): A(f'v_exp_f32 v{8+i}, v{8+i}')
    A(f'v_mul_f32 v5, v8, v{GR+1}')
    for i in range(1, 4): A(f'v_fmac_f32 v5, v{8+i}, v{GR+4*i+1}')
    red('v_add_f32', [5], [R8, 'p16', 'p32'], [6])
    A('v_rcp_f32 v5, v5\nv_sub_f32 v6, v39, v4\nv_mul_f32 v6, s7, v6\nv_exp_f32 v6, v6\nv_mul_f32 v6, v6, v5')
    addr(7, [(0, 3, 32), (3, 3, 4)], tmp=8)
    A(f'ds_write_b32 v7, v6 offset:{LF}')
    A.label('L_c5')
    if not r1st: stamp(8)
    lds_spin(C_XS, 8, 4, sleep=2)
    if PT1 == 1: A('s_cmp_lg_u32 s3, 2\ns_cbranch_scc1 L_pre1')
    if PT1 < 2: wsload(136, 31, 0)
    A.label('L_pre1')
    A('s_cmp_lg_u32 s3, 1\ns_cbranch_scc1 L_pre2')
    A('s_and_b32 s4, s2, 7\ns_cmp_ge_u32 s4, 2\ns_cbranch_scc1 L_pre2')
    wsload(140, 37, XS); wsload(144, 37, CS)
    A.label('L_pre2')
    def mr_pub():
        A('s_cmp_lg_u32 s3, 0\ns_cbranch_scc1 L_pre3')
        lds_spin(C_TB, 4, 4)
        red4_publish(32, LRED2, False)
        A.label('L_pre3')
    if MRP == 0: mr_pub()
    lds_spin(C_WO, WOC, 4, sleep=2)
    tile_loads(W2R, 33, 's[52:55]', 2048)
    if MRP == 1: mr_pub()
    A(f'v_add_u32 v2, {LV}, v19\nv_add_u32 v1, {LV + 4*NL*1024}, v19')
    A('v_mov_b32 v35, 0\ns_waitcnt lgkmcnt(0)')
    A('s_barrier')
    stamp(9)
    A(f'ds_read_b32 v35, v35 offset:{C_H}')
    A(f'ds_read_b128 v[4:7], v28 offset:{LF}\nds_read_b128 v[8:11], v28 offset:{LF+16}')
    for w in range(8): A(f'ds_read_b128 {v(GR+4*w,4)}, v{2 if w < 4 else 1} offset:{NL*1024*(w%4)}')
    for w in range(8):
        A(f's_waitcnt lgkmcnt({7-w})')
        if w == 1: A('v_readfirstlane_b32 s67, v35')
        sel = 'op_sel:[0,1,0] op_sel_hi:[1,1,1]' if w & 1 else 'op_sel:[0,0,0] op_sel_hi:[1,0,1]'
        for k in (0, 2):
            if w == 0: A(f'v_pk_mul_f32 {v(12+k,2)}, {v(GR+k,2)}, v[4:5] op_sel_hi:[1,0]')
            else: A(f'v_pk_fma_f32 {v(12+k,2)}, {v(GR+4*w+k,2)}, {v(4+(w&~1),2)}, {v(12+k,2)} {sel}')
    embed(4, [12, 13, 14, 15], False)
    locstore(4, 27)
    A('v_mov_b32 v9, s60')
    spin(136, 31, [0], 12, net=True, sleep=OS)
    if r1st == 3: stamp(7)
    tred(32, [(136, 138), (137, 139)])
    tred(16, [(136, 137)])
    red('v_add_f32', [136], ['row_ror:2', 'row_ror:4', R8])
    A('v_mov_b32 v137, v136\nv_permlane16_swap_b32 v136, v137\nv_cvt_pk_bf16_f32 v8, v136, v137')
    A(f's_mov_b32 exec_lo, {255 if O2F else 3}\ns_mov_b32 exec_hi, {255 if O2F else 3}')
    if not abl & 32: A('buffer_store_dwordx2 v[8:9], v17, s[44:47], 0 offen sc1')
    A('s_mov_b64 exec, -1')
    stamp(10)
    if MRP == 2: mr_pub()
    perm_all(BF, W2R)
    spin(GR, 29, [0], 12, full=2, sleep=GS)
    stamp(11)
    for k in range(4): A(f'v_mov_b32_dpp v{4+k}, v{GR+2*(k&1)} quad_perm:{"[0,0,2,2]" if k < 2 else "[1,1,3,3]"} {MK}')
    for n in range(8): mfma(AC2 + 4 * n, 4, BF + 4 * n, True)
    select_out(8, AC2)
    A(f'ds_write_b128 v19, v[8:11] offset:{LRED}')
    A('s_waitcnt lgkmcnt(0)')
    A('s_barrier')
    A('s_cmp_lg_u32 s3, 0\ns_cbranch_scc1 L_c6')
    red4_publish(30, LRED, False)
    A.label('L_c6')
    A('s_and_b32 s4, s2, 7\ns_cmp_ge_u32 s4, 2\ns_cbranch_scc1 L_c7')
    A('s_cmp_eq_u32 s3, 1\ns_cbranch_scc1 L_fin')
    A('s_cmp_lg_u32 s3, 2\ns_cbranch_scc1 L_c7')
    def sums_get(base, d0, mid=None):
        spin(GR, 37, [base], 12, full=1, mid=mid)
        red('v_add_f32', [GR, GR + 1, GR + 2], [X1_, X2_, HM, RM, 'p16'], [GR + 4, GR + 5, GR + 6])
        for j in range(3): A(f'v_mul_f32 v{d0+j}, {hx(f2u(1.0/1024))}, v{GR+j}\nv_mul_f32 v{d0+3+j}, {hx(f2u(1.0/1024))}, v{GR+j}')
        for j in range(3): A(f'v_permlane32_swap_b32 v{d0+j}, v{d0+3+j}')
    spin(GR, 34, [m * 64 * SL for m in range(4)], 5)
    tred(32, [(GR + 4 * m + 2 * j, GR + 4 * m + 2 * j + 1) for m in range(4) for j in range(2)])
    tred(16, [(GR + 4 * m, GR + 4 * m + 2) for m in range(4)])
    for m in range(4): A(f'v_add_f32_dpp v{GA+m}, v{GR+4*m}, v{GR+4*m} {R8} {MK}')
    rnd2(GA, SBr, 4); rnd2(Ur, GB, 5)
    A(f'v_add_f32 v{Ur}, 1.0, v{Ur}'); rnd1(Ur)
    A(f'ds_write_b128 v18, {v(GA,4)} offset:{LRED2}')
    lds_inc(C_MR, 12)
    A(f'v_mov_b32 v4, v{Ur}\nv_mul_f32 v5, v{Ur}, v{Ur}\nv_mul_f32 v6, v{Ur}, v{SBr}\nv_mov_b32 v7, v{SBr}\nv_mul_f32 v8, v{SBr}, v{SBr}\nv_mov_b32 v9, 0')
    sums_publish(4, CS)
    sums_get(CS, CU)
    A(f'v_mov_b32 v4, 0\ns_mov_b64 exec, 1\nds_write_b128 v4, {v(CU,4)} offset:{LRED2+1024}\nds_write_b32 v4, v{CU+4} offset:{LRED2+1040}\ns_mov_b64 exec, -1')
    lds_spin(C_PL, 3, 12)
    lds_inc(C_MR, 12)
    A.label('L_c7')
    stamp(12)
    stamp_flush(13)
    A('s_endpgm')
    A.label('L_fin')
    A(f'v_lshlrev_b32 v{XO}, 16, v{XO}\nv_lshlrev_b32 v{B2r}, 16, v{B2r}')
    lds_spin(C_MR, 1, 12, sleep=0)
    A(f'ds_read_b128 {v(GA,4)}, v18 offset:{LRED2}')
    spin(GR, 38, [64 * SL * i for i in range(4)], 12)
    stamp(12)
    for k in range(4): A(f'v_add_f32 v{4+k}, v{GR+k}, v{GR+4+k}\nv_add_f32 v{8+k}, v{GR+8+k}, v{GR+12+k}')
    for k in range(4): A(f'v_add_f32 v{4+k}, v{4+k}, v{8+k}')
    tred(32, [(4, 5), (6, 7)]); tred(16, [(4, 6)]); red('v_add_f32', [4], [R8])
    rnd1(4)
    A(f's_waitcnt lgkmcnt(0)\nv_mul_f32 v4, v4, v{GA}'); rnd1(4)
    A(f'v_add_f32 v{XO}, v{XO}, v4'); rnd1(XO)
    A(f'v_mov_b32 v4, v{XO}\nv_mul_f32 v5, v{XO}, v{XO}\nv_mul_f32 v6, v{XO}, v{Ur}\nv_mul_f32 v7, v6, v6\nv_mul_f32 v8, v6, v{Ur}\nv_mul_f32 v9, v6, v{SBr}')
    sums_publish(4, XS)
    def consts():
        lds_spin(C_MR, 2, 12, sleep=0)
        A(f's_mov_b32 s10, {POLL_LIMIT}')
        A(f'ds_read_b128 {v(CU,4)}, v13 offset:{LRED2+1024}\nds_read_b32 v{CU+4}, v13 offset:{LRED2+1040}')
    sums_get(XS, 40, consts)
    A('s_waitcnt lgkmcnt(0)')
    stamp(13)
    A('v_mov_b32 v4, v40\nv_fma_f32 v5, -v40, v40, v41\nv_max_f32 v5, 0, v5')
    sigma(4)
    A(f'v_fma_f32 v42, -v4, v{CU}, v42')
    A(f'v_fma_f32 v45, -v4, v{CU+2}, v45')
    A(f'v_mul_f32 v10, v4, v{CU+1}\nv_fma_f32 v10, -2.0, v44, v10\nv_fma_f32 v43, v4, v10, v43')
    A(f'v_sub_f32 v12, v{XO}, v4'); rnd1(12)
    A(f'v_fma_f32 v8, v5, v42, v{CU+3}')
    A(f'v_mul_f32 v43, v43, v5\nv_fma_f32 v43, 2.0, v45, v43\nv_fma_f32 v9, v43, v5, v{CU+4}')
    A('v_mul_f32 v12, v12, v5'); rnd1(12)
    A('v_fma_f32 v9, -v8, v8, v9\nv_max_f32 v9, 0, v9')
    A(f'v_mul_f32 v12, v12, v{Ur}'); rnd1(12)
    sigma(8)
    A(f'v_add_f32 v12, v12, v{SBr}'); rnd1(12)
    A('v_sub_f32 v12, v12, v8'); rnd1(12)
    A('v_mul_f32 v12, v12, v9'); rnd1(12)
    A(f'v_bfe_u32 v13, v12, 16, 15\nv_subrev_u32 v13, {E0*128}, v13\nv_lshrrev_b32 v14, 31, v12')
    A(f'v_cmp_lt_u32 vcc, {NB*128-1 if not force_fb else 128*17}, v13')
    A(f'v_min_u32 v13, {NB*128-1}, v13\nv_mul_u32_u24 v14, {NB*128}, v14\nv_add_lshl_u32 v13, v13, v14, 2')
    A(f'ds_read_b32 v15, v13 offset:{LT}')
    if not abl: A('s_cbranch_vccnz L_fb0')
    A.label('L_nofb')
    A('s_waitcnt lgkmcnt(0)')
    rnd1(15)
    A(f'v_add_f32 v15, v15, v{B2r}'); rnd1(15)
    A(f'v_mul_f32 v15, v15, v{GB}'); rnd1(15)
    A(f'v_add_f32 v15, v15, v{XO}')
    A('v_cvt_pk_bf16_f32 v15, v15, v15')
    A('s_mov_b32 exec_lo, 0x00ff00ff\ns_mov_b32 exec_hi, 0x00ff00ff')
    A('global_store_short v36, v15, s[40:41]')
    A('s_cmp_lg_u32 s2, 0\ns_cbranch_scc1 L_f2')
    A('v_mov_b32 v4, 0\nv_mov_b32 v5, s60\ns_mov_b64 exec, 1')
    A('buffer_store_dword v5, v4, s[44:47], 0 offen sc1')
    if hold:
        A.label('L_hold')
        A(f's_memrealtime s[72:73]\ns_waitcnt lgkmcnt(0)\ns_sub_u32 s4, s72, s70\ns_cmp_lt_u32 s4, {hold*100}\ns_cbranch_scc1 L_hold')
    A.label('L_f2')
    if stamps: A(f's_memrealtime s[70:71]\ns_waitcnt lgkmcnt(0)\ns_mov_b32 s{SB+1}, s70')
    stamp_flush(14)
    A.label('L_end')
    A('s_endpgm')
    for X, Y, E, net in cold:
        A.label(X)
        A(f's_cmp_eq_u32 s10, 0\ns_cbranch_scc1 {X}e')
        if net: A('buffer_wbl2 sc1\ns_waitcnt vmcnt(0)\nbuffer_inv sc1\ns_waitcnt vmcnt(0)')
        A(f's_branch {Y}')
        A.label(X + 'e')
        A(f's_waitcnt vmcnt(0)\ns_branch {E}')
    A.label('L_fb0')
    A('s_mov_b64 s[66:67], vcc')
    A('s_waitcnt lgkmcnt(0)')
    tab_consts()
    A.label('L_fb')
    A('s_ff1_i32_b64 s4, s[66:67]')
    A('v_readlane_b32 s64, v12, s4')
    A('s_mov_b32 s6, 0\nv_mov_b32 v13, 0')
    A('s_mov_b32 s65, s64')
    A.label('L_fb2')
    tab_load('s6'); tab_unpack(); tab_eval()
    A(f'v_add_f32 v13, v13, v{TA}')
    A('s_add_u32 s6, s6, 1\ns_cmp_lt_u32 s6, 4\ns_cbranch_scc1 L_fb2')
    red('v_add_f32', [13], [X1_, X2_, HM, RM, 'p16', 'p32'], [14])
    A('v_cmp_eq_u32 vcc, s64, v12')
    A('v_cndmask_b32 v15, v15, v13, vcc')
    A('s_andn2_b64 s[66:67], s[66:67], vcc')
    A('s_cbranch_scc1 L_fb')
    A('s_branch L_nofb')
    A.label('L_tab')
    A('s_setprio 0')
    A.label('L_tab1')
    A('s_mov_b32 s65, s64')
    tab_eval()
    A('v_lshrrev_b32 v4, 2, v0\nv_add_u32 v4, s6, v4')
    red('v_add_f32', [TA], [X1_, X2_, HM, RM])
    A('s_mov_b32 exec_lo, 0x00010001\ns_mov_b32 exec_hi, 0x00010001')
    A(f'ds_write_b32 v4, v{TA} offset:{LTP}')
    A('s_mov_b64 exec, -1')
    A('s_add_u32 s6, s6, 64\ns_add_u32 s64, s64, 0x10000\ns_add_u32 s66, s66, 1\ns_cmp_lt_u32 s66, s5')
    A('s_cbranch_scc1 L_tab1')
    A('s_setprio 3')
    A('s_setpc_b64 s[68:69]')
    A.label('L_codeend')
    A.raw('.section .rodata,"a"'); A.raw('.p2align 6'); A.raw(f'.amdhsa_kernel {KN}')
    A.raw('  .amdhsa_next_free_vgpr 168'); A.raw('  .amdhsa_next_free_sgpr 102'); A.raw('  .amdhsa_accum_offset 168')
    A.raw('  .amdhsa_group_segment_fixed_size 0'); A.raw('  .amdhsa_kernarg_size 120'); A.raw('  .amdhsa_user_sgpr_count 2')
    A.raw('  .amdhsa_user_sgpr_kernarg_segment_ptr 1'); A.raw('  .amdhsa_system_sgpr_workgroup_id_x 1'); A.raw('.end_amdhsa_kernel')
    return A.text()

if __name__ == '__main__':
    open('k12.s', 'w').write(gen())
    open('k12_st.s', 'w').write(gen(stamps=1))
    open('k12_fb.s', 'w').write(gen(force_fb=1))
```

```python
import sys, struct
from asmlib import Asm
KN = 'adaLN_cond__gqa_block_cached__mixer_token_mlp__decode_kernel'

def f2u(x): return struct.unpack('<I', struct.pack('<f', x))[0]
def hx(x): return '0x%08x' % (x & 0xffffffff)
LOG2E = 1.4426950408889634
STAMP_OFF = 200 << 20
LQ = 0; LST = 2048; LF = 2560; LCNT = 2816; LXS = 2880; LRED = 3072; LTP = 7168; LRED2 = 9216; LT = 13312
C_P2, C_Q, C_ST, C_XS, C_TB, C_WO, C_V, C_PL, C_MR, C_H, C_T1, C_T2, C_O = [LCNT + 4 * i for i in range(13)]
NB = 20; E0 = 111
LV = LT + NB * 1024
POLL_LIMIT = 131072
HEADER = """; adaLN -> GQA decode attention -> out-proj -> adaLN -> token-mixer MLP, one persistent launch.
"""
def v(a, n=1): return f'v{a}' if n == 1 else f'v[{a}:{a+n-1}]'
def log2(x):
    l = x.bit_length() - 1
    return l if (1 << l) == x else None

def gen(stamps=0, D1=3, D2=3, D3=4, N3=24, STAT=20, force_fb=0, abl=0, N1=13, N10=10, N2=15,
        ROT=0, GRP=0, SL=8448, cpf=1, OS=0, GS=0, nost=0, NET=128, loc=1, r1st=0, NL=14, cpf0=1, tlb=0, K0=3, B0e=0,
        WOAT=31, WOC=8, PREAT=31, MRP=1, PT1=1, O2F=0, OST=32, hold=0, TH_=16, TQ=38, TGC=8, O1=0, PR=99, DQ=0, QO=0, norsc=0, FS=1, GSC=0, notab=0, DA=0, NA0=0, NA1=0, ALT=0, PACE=0, B0p=2):
    ST = 0x8000; CS = 0x10000; XS = 0x12000; HR = 0x14000; TB = 0x18000; Q2 = 0x20000; O2 = 0x40000
    SLOT = 0x60000
    MODP = SLOT; QP = SLOT + 1024; MODR = SLOT + 2048; AP = SLOT + 3072; OP = SLOT + 4096
    WS_USED = SLOT + 256 * SL
    LOC = '' if loc else 'sc1'
    A = Asm()
    A.raw(HEADER.rstrip())
    A.raw(f'; @launch grid=(256,1,1) block=(768,1,1) lds={LV + 8 * NL * 1024}')
    A.raw('.amdgcn_target "amdgcn-amd-amdhsa--gfx950"')
    A.raw('.text'); A.raw(f'.globl {KN}'); A.raw('.p2align 8'); A.raw(f'.type {KN},@function'); A.raw(f'{KN}:')
    SB = 72
    def stamp(i):
        if stamps: A(f's_memrealtime s[70:71]\ns_waitcnt lgkmcnt(0)\ns_mov_b32 s{SB+i}, s70')
    def stamp_flush(n):
        if not stamps: return
        A('s_waitcnt lgkmcnt(0) vmcnt(0)')
        A('s_mov_b64 exec, 1')
        A(f's_mul_i32 s4, s2, 12\ns_add_u32 s4, s4, s3\ns_lshl_b32 s4, s4, 7\ns_add_u32 s4, s4, {STAMP_OFF}')
        A('v_mov_b32 v1, s4\nv_mov_b32 v3, 0')
        for i in range(n):
            A(f'v_mov_b32 v2, s{SB+i}')
            A(f'global_store_dwordx2 v1, v[2:3], s[42:43] offset:{8*i}')
            A('s_nop 1')
    def sexpr(dst, terms, const=0, tmp='s5'):
        first = True
        for src, pos, n, mult in terms:
            t = dst if first else tmp
            A(f's_bfe_u32 {t}, {src}, {hex((n << 16) | pos)}')
            if mult != 1:
                l = log2(mult)
                A(f's_lshl_b32 {t}, {t}, {l}' if l is not None else f's_mul_i32 {t}, {t}, {mult}')
            if not first: A(f's_add_u32 {dst}, {dst}, {tmp}')
            first = False
        if first: A(f's_mov_b32 {dst}, {const}')
        elif const: A(f's_add_u32 {dst}, {dst}, {const}')
    def addr(dst, lane, sterms=(), const=0, tmp=None):
        has_s = bool(sterms) or const
        if has_s: sexpr('s4', sterms, const)
        acc = None
        for pos, n, mult in lane:
            l = log2(mult)
            t = dst if acc is None and not has_s else tmp
            if pos == 0 and n == 6: src = 'v0'
            elif pos + n == 6: A(f'v_lshrrev_b32 v{t}, {pos}, v0'); src = f'v{t}'
            elif pos == 0: A(f'v_and_b32 v{t}, {(1<<n)-1}, v0'); src = f'v{t}'
            else: A(f'v_bfe_u32 v{t}, v0, {pos}, {n}'); src = f'v{t}'
            prev = acc if acc is not None else ('s4' if has_s else None)
            if prev is None:
                A(f'v_lshlrev_b32 v{dst}, {l}, {src}' if l is not None else f'v_mul_u32_u24 v{dst}, {mult}, {src}')
            elif l is not None:
                A(f'v_lshl_add_u32 v{dst}, {src}, {l}, {prev}')
            else:
                A(f'v_mul_u32_u24 v{t}, {mult}, {src}\nv_add_u32 v{dst}, {prev}, v{t}')
            acc = f'v{dst}'
    def rnd2(a, b, tmp):
        A(f'v_cvt_pk_bf16_f32 v{tmp}, v{a}, v{b}\nv_lshlrev_b32 v{a}, 16, v{tmp}\nv_and_b32 v{b}, 0xffff0000, v{tmp}')
    def rnd1(a):
        A(f'v_cvt_pk_bf16_f32 v{a}, v{a}, v{a}\nv_and_b32 v{a}, 0xffff0000, v{a}')
    MK = 'row_mask:0xf bank_mask:0xf'
    X1_ = 'quad_perm:[1,0,3,2]'; X2_ = 'quad_perm:[2,3,0,1]'; HM = 'row_half_mirror'; RM = 'row_mirror'; R8 = 'row_ror:8'
    def red(op, regs, steps, tmp=None):
        for s in steps:
            if s in ('p16', 'p32'):
                for r, t in zip(regs, tmp): A(f'v_mov_b32 v{t}, v{r}')
                for r, t in zip(regs, tmp): A(f'v_permlane{s[1:]}_swap_b32 v{r}, v{t}')
                for r, t in zip(regs, tmp): A(f'{op} v{r}, v{r}, v{t}')
            else:
                for r in regs: A(f'{op}_dpp v{r}, v{r}, v{r} {s} {MK}')
    def tred(kind, pairs):
        for a, b in pairs: A(f'v_permlane{kind}_swap_b32 v{a}, v{b}')
        for a, b in pairs: A(f'v_add_f32 v{a}, v{a}, v{b}')
    def embed(dst, srcs, rnd=True):
        if rnd:
            for k, s in enumerate(srcs): A(f'v_add_u32 v{dst+k}, 0x80, v{s}')
            srcs = range(dst, dst + 4)
        for k, s in enumerate(srcs): A(f'v_bfi_b32 v{dst+k}, v3, s{56+k}, v{s}')
    def wsload(r, vaddr, o):
        so = o & ~0xfff; io = o & 0xfff
        if so: A(f's_mov_b32 s11, {so}')
        A(f'buffer_load_dwordx4 {v(r,4)}, v{vaddr}, s[44:47], {"s11" if so else "0"} offen offset:{io} sc1')
    mk = lambda i: f's[{86+2*i}:{87+2*i}]'
    def check(r, i, tmp, full):
        if full == 2:
            A(f'v_xor_b32 v{tmp}, s60, v{r+1}\nv_bitop3_b32 v{tmp}, v{tmp}, v{r+3}, s60 bitop3:0xf6\nv_cmp_ne_u32 {mk(i)}, 0, v{tmp}')
        elif full: A(f'v_cmp_ne_u32 {mk(i)}, s60, v{r+3}')
        else:
            for k in range(4): A(f'v_xor_b32 v{r+k}, s{56+k}, v{r+k}')
            A(f'v_or3_b32 v{tmp}, v{r}, v{r+1}, v{r+2}')
            A(f'v_bitop3_b32 v{tmp}, v{tmp}, v{r+3}, v3 bitop3:0xa8')
            A(f'v_cmp_ne_u32 {mk(i)}, 0, v{tmp}')
    def spin(dst, vaddr, offs, tmp, full=False, net=False, sleep=0, mid=None):
        if abl & 2:
            if mid: A('s_waitcnt vmcnt(0)'); mid()
            return
        n = len(offs)
        L = A.newlabel('Lsp'); E = A.newlabel('Lspe'); R = A.newlabel('Lspr')
        for i, o in enumerate(offs): A(f's_mov_b32 s{88+i}, {o & ~0xfff}')
        A(f's_mov_b32 s10, {POLL_LIMIT}')
        def loads():
            for i, o in enumerate(offs): A(f'buffer_load_dwordx4 {v(dst+4*i,4)}, v{vaddr}, s[44:47], s{88+i} offen offset:{o & 0xfff} sc1')
        if mid:
            loads(); mid(); A(f's_branch {R}')
        A.label(L)
        loads()
        A.label(R)
        A('s_sub_u32 s10, s10, 1')
        A(f's_and_b32 s8, s10, {NET-1}')
        X = A.newlabel('Lspx'); Y = A.newlabel('Lspy')
        A(f's_cbranch_scc0 {X}')
        A.label(Y)
        for i in range(n):
            r = dst + 4 * i
            A(f's_waitcnt vmcnt({n-1-i})')
            if full == 2: A(f'v_xor_b32 v{tmp}, s60, v{r+1}\nv_bitop3_b32 v{tmp}, v{tmp}, v{r+3}, s60 bitop3:0xf6')
            elif full: A(f'v_xor_b32 v{tmp}, s60, v{r+3}')
            else:
                for k in range(4):
                    if i == 0 and k == 0: A(f'v_xor_b32 v{tmp}, s56, v{r}')
                    else: A(f'v_bitop3_b32 v{tmp}, v{tmp}, v{r+k}, s{56+k} bitop3:0xf6')
        if not full: A(f'v_and_b32 v{tmp}, 0xff, v{tmp}')
        A(f'v_cmp_ne_u32 vcc, 0, v{tmp}')
        if sleep:
            A(f's_cbranch_vccz {E}\ns_sleep {sleep}\ns_branch {L}')
        else:
            A.raw('    s_cbranch_vccnz ' + L)
        A.label(E)
        cold.append((X, Y, E, net))
    cold = []
    def gather(dst, n, vaddr, offs, tmp, full=False, th=0, mid=None, kind=2, sleep=0, net=False, extra=0, retry=None, phase=3):
        if abl & kind:
            if mid: A('s_waitcnt vmcnt(0)'); mid()
            return
        L = A.newlabel('Lpoll'); E = A.newlabel('Lpend')
        if phase & 1:
            for i in range(n): wsload(dst + 4 * i, vaddr, offs[i])
            if mid: mid()
            for i in range(n):
                A(f's_waitcnt vmcnt({n-1-i+extra})'); check(dst + 4 * i, i, tmp, full)
        if not phase & 2: return
        A(f's_mov_b32 s10, {POLL_LIMIT}')
        if phase == 2:
            L0 = A.newlabel('Lp0'); A(f's_branch {L0}')
        A.label(L)
        if n == 1:
            if th: A(f's_bcnt1_i32_b64 s8, {mk(0)}\ns_cmp_le_u32 s8, {th}')
            else: A(f's_cmp_eq_u64 {mk(0)}, 0')
            A(f's_cbranch_scc1 {E}')
        else:
            A(f's_or_b64 s[8:9], {mk(0)}, {mk(1)}')
            for i in range(2, n): A(f's_or_b64 s[8:9], s[8:9], {mk(i)}')
            A(f's_cbranch_scc0 {E}')
        A('s_sub_u32 s10, s10, 1')
        A(f's_cbranch_scc1 {E}')
        if retry: retry()
        if sleep: A(f's_sleep {sleep}')
        if net:
            Nn = A.newlabel('Lnet')
            A(f's_and_b32 s8, s10, {NET-1}\ns_cbranch_scc1 {Nn}')
            A('s_mov_b64 exec, -1\nbuffer_wbl2 sc1\ns_waitcnt vmcnt(0)\nbuffer_inv sc1\ns_waitcnt vmcnt(0)')
            A.label(Nn)
        if phase == 2: A.label(L0)
        for i in range(n):
            A(f's_mov_b64 exec, {mk(i)}')
            if n > 1:
                S = A.newlabel('Lsk'); A(f's_cbranch_execz {S}')
            wsload(dst + 4 * i, vaddr, offs[i])
            if n > 1: A.label(S)
        if phase == 2 and mid: mid()
        A('s_waitcnt vmcnt(0)')
        for i in range(n):
            if n > 1:
                S = A.newlabel('Lsk'); A(f's_mov_b64 exec, {mk(i)}'); A(f's_cbranch_execz {S}')
            check(dst + 4 * i, i, tmp, full)
            if n > 1: A.label(S)
        A(f's_branch {L}')
        A.label(E)
        A('s_mov_b64 exec, -1')
    def lds_spin(off, val, vt, sleep=1):
        L = A.newlabel('Lspin'); E = A.newlabel('Lspe')
        A(f's_mov_b32 s10, {POLL_LIMIT*20}\nv_mov_b32 v{vt+1}, 0')
        A.label(L)
        A(f'ds_read_b32 v{vt}, v{vt+1} offset:{off}')
        A('s_waitcnt lgkmcnt(0)')
        A(f'v_readfirstlane_b32 s11, v{vt}')
        A(f's_cmp_ge_u32 s11, {val}')
        A(f's_cbranch_scc1 {E}')
        if sleep: A(f's_sleep {sleep}')
        A('s_sub_u32 s10, s10, 1')
        A(f's_cbranch_scc0 {L}')
        A.label(E)
    def lds_inc(off, vt, rtn=False):
        A(f'v_mov_b32 v{vt}, 0\nv_mov_b32 v{vt+1}, 1')
        A('s_waitcnt lgkmcnt(0)')
        A('s_mov_b64 exec, 1')
        if rtn: A(f'ds_add_rtn_u32 v{vt+1}, v{vt}, v{vt+1} offset:{off}')
        else: A(f'ds_add_u32 v{vt}, v{vt+1} offset:{off}')
        A('s_mov_b64 exec, -1')
        if rtn:
            A('s_waitcnt lgkmcnt(0)')
            A(f'v_readfirstlane_b32 s4, v{vt+1}')
    def tile_loads(dst, vaddr, srd, stride, row0=0, rng=range(8)):
        for i in rng:
            o = (row0 + i) * stride
            if o: A(f's_mov_b32 s11, {o}')
            A(f'buffer_load_dwordx4 {v(dst+4*i,4)}, v{vaddr}, {srd}, {"s11" if o else "0"} offen nt')
    def perm_pair(f0, f1, raw, t):
        for b in range(4):
            X = raw + 8 * b + t; Y = X + 4
            A(f'v_perm_b32 v{f0+b}, v{Y}, v{X}, s12')
            A(f'v_perm_b32 v{f1+b}, v{Y}, v{X}, s13')
    def perm_all(dst, raw):
        for t in range(4): perm_pair(dst + 8 * t, dst + 8 * t + 4, raw, t)
    def mfma(acc, a, b, first):
        A(f'v_mfma_f32_16x16x32_bf16 {v(acc,4)}, {v(a,4)}, {v(b,4)}, {"0" if first else v(acc,4)}')
    def select_out(dst, acc):
        for k in range(4): A(f'v_cndmask_b32 v{dst+k}, v{acc+4*k}, v{acc+16+4*k}, s[14:15]')
    stid = [0]
    def wsstore(r, vaddr, soff='0', fl='sc1'):
        stid[0] += 1
        if abl & 32 or (nost >> (stid[0] - 1)) & 1: return
        A(f'buffer_store_dwordx4 {v(r,4)}, v{vaddr}, s[44:47], {soff} offen {fl}')
    def locstore(r, vaddr, soff='0'):
        if not loc: return wsstore(r, vaddr, soff)
        L1 = A.newlabel('Lst'); L2 = A.newlabel('Lst')
        A(f's_cmp_lg_u32 s67, 0\ns_cbranch_scc1 {L1}')
        wsstore(r, vaddr, soff, '')
        A(f's_branch {L2}')
        A.label(L1)
        wsstore(r, vaddr, soff)
        A.label(L2)
    def tags():
        A('s_add_u32 s60, s60, 0x01010101')
        A('s_and_b32 s56, s60, 0xff\ns_bfe_u32 s57, s60, 0x80008\ns_bfe_u32 s58, s60, 0x80010\ns_lshr_b32 s59, s60, 24')
    def srd(n, base, size):
        A(f's_mov_b32 s{n}, s{base}\ns_mov_b32 s{n+1}, s{base+1}\ns_mov_b32 s{n+2}, {size}\ns_mov_b32 s{n+3}, 0x20000')
    G_ = ('s2', 0, 3); C_ = ('s2', 3, 5); CW = ('s3', 0, 2)
    T_ = lambda f, m: f + (m,)

    A('s_cmp_ge_u32 s2, 256\ns_cbranch_scc1 L_end')
    A('s_load_dwordx16 s[16:31], s[0:1], 0')
    A('s_load_dwordx8 s[32:39], s[0:1], 64')
    A('s_load_dwordx2 s[40:41], s[0:1], 96')
    A('s_load_dwordx2 s[42:43], s[0:1], 112')
    if stamps or hold: A('s_memrealtime s[70:71]')
    A('v_lshrrev_b32 v1, 6, v0')
    A('v_and_b32 v0, 63, v0')
    A('v_readfirstlane_b32 s3, v1')
    A('s_mov_b32 s12, 0x05040100\ns_mov_b32 s13, 0x07060302')
    A('s_cmp_lt_u32 s3, 4')
    A('s_cbranch_scc1 L_ctrl')

    KB = 40; QF = 4; CT = 12; S = 20; T = 36; OA = 136
    USTEP = (1 << 20) if GRP else 32768
    A('s_setprio 1')
    if cpf0:
        A('s_cmp_lg_u32 s3, 4\ns_cbranch_scc1 L_cp0')
        A('s_getpc_b64 s[8:9]')
        A.label('L_pc0')
        A(f's_lshr_b32 s4, s2, 3\ns_lshl_b32 s4, s4, 10\ns_min_u32 s4, s4, L_codeend-L_pc0-1024\nv_lshlrev_b32 v4, 4, v0\nv_add_u32 v4, s4, v4')
        A('global_load_dwordx4 v[32:35], v4, s[8:9]')
        A.label('L_cp0')
    addr(1, [(1, 1, 1024), (2, 2, 256), (4, 2, 32), (0, 1, 16)], tmp=4)
    A('v_lshlrev_b32 v2, 4, v0')
    addr(39, [(1, 3, 256), (4, 2, 32), (0, 1, 16)], tmp=4)
    A('s_sub_u32 s6, s3, 4')
    sexpr('s4', [T_(G_, 1 << 23), T_(C_, 32768 if GRP else 262144), ('s6', 0, 3, 4096)])
    A(f's_lshr_b32 s61, s2, 3\ns_mul_i32 s61, s61, {ROT*USTEP}\ns_and_b32 s61, s61, {8*USTEP-1}')
    A(f's_sub_u32 s5, {64<<20}, s4')
    A('s_mov_b32 s14, 0xaaaaaaaa\ns_mov_b32 s15, 0xaaaaaaaa')
    A('v_mov_b32 v3, 0xffff\nv_mov_b32 v9, 0xffff0000\nv_cndmask_b32 v3, v3, v9, s[14:15]')
    A('s_waitcnt lgkmcnt(0)')
    if stamps: A(f's_mov_b32 s{SB}, s70')
    A('s_add_u32 s48, s18, s4\ns_addc_u32 s49, s19, 0\ns_mov_b32 s50, s5\ns_mov_b32 s51, 0x20000')
    A('s_add_u32 s52, s20, s4\ns_addc_u32 s53, s21, 0\ns_mov_b32 s54, s5\ns_mov_b32 s55, 0x20000')
    issued = [0]; nv = [0]
    def wait_load(k): A(f's_waitcnt vmcnt({max(issued[0] - 1 - k, 0)})')
    def unit(n):
        if n % 4 == 0:
            A('s_mov_b32 s7, s61' if n == 0 else f's_add_u32 s7, s7, {USTEP}\ns_and_b32 s7, s7, {8*USTEP-1}')
    def kload(n):
        d = DA if (DA and NA0 <= n < NA1) else D1
        if ALT and n % ALT == ALT - 1: d -= 1
        if issued[0] >= d and n >= K0: A(f's_waitcnt vmcnt({d-1})')
        unit(n); j = n % 4
        A(f'buffer_load_dwordx4 {v(KB+4*n,4)}, v1, s[48:51], s7 offen offset:{(j>>1)*2048+(j&1)*128} nt')
        issued[0] += 1
        if n == PR: A('s_cmp_lt_u32 s6, 4\ns_cbranch_scc1 L_pr\ns_setprio 2'); A.label('L_pr')
        if n == TH_: lds_inc(C_T1, T)
        if n == TQ: lds_inc(C_T2, T)
    def vslot(n): return KB + 4 * (n % 24)
    dq = [0]
    def dcur(): return dq[0] or (D3 if nv[0] >= N3 else D2)
    def vload():
        n = nv[0]
        A(f's_waitcnt vmcnt({dcur()-1-(1 if ALT and n % ALT == ALT - 1 and n < N3 else 0)})')
        unit(n)
        if n < NL:
            if n % 4 == 0: A(f's_add_u32 m0, s62, {n*1024}')
            A(f'buffer_load_dwordx4 v2, s[52:55], s7 offen offset:{(n%4)*1024} nt lds')
        else:
            A(f'buffer_load_dwordx4 {v(vslot(n),4)}, v2, s[52:55], s7 offen offset:{(n%4)*1024} nt')
        issued[0] += 1; nv[0] += 1
        if n + 32 == PR: A('s_cmp_lt_u32 s6, 4\ns_cbranch_scc1 L_pr\ns_setprio 2'); A.label('L_pr')
        if n + 32 == TQ: lds_inc(C_T2, T)
        if n == WOAT: lds_inc(C_WO, T)
        if n == STAT: lds_inc(C_V, T)
        if n == PREAT: lds_inc(C_XS, T)
    if tlb:
        A('s_cmp_lg_u32 s3, 5\ns_cbranch_scc1 L_tl0')
        A('s_mov_b64 exec, 1\nv_mov_b32 v4, 0')
        A('buffer_load_dword v32, v4, s[52:55], 0 offen nt')
        A('global_load_dword v33, v4, s[40:41]')
        A(f'v_mov_b32 v5, {0x100000}\nglobal_load_dword v34, v5, s[42:43]\nv_mov_b32 v6, {0x220000}\nglobal_load_dword v35, v6, s[42:43]')
        sexpr('s4', [T_(G_, 4 * 128 * 2048), ('s2', 3, 2, 128 * 2048)])
        A('v_mov_b32 v7, s4\nglobal_load_dword v31, v7, s[24:25] nt')
        sexpr('s4', [('s2', 4, 3, 128 * 12288)])
        A('v_mov_b32 v8, s4\nglobal_load_dword v30, v8, s[38:39] nt')
        A(f'v_add_u32 v8, {127*12288}, v8\nglobal_load_dword v29, v8, s[38:39] nt')
        A('global_load_ushort v28, v4, s[34:35]')
        A('s_mov_b64 exec, -1')
        A.label('L_tl0')
    stamp(5)
    for n in range(K0): kload(n)
    A('s_barrier')
    stamp(6)
    A(f's_mul_i32 s62, s6, {NL*1024}\ns_add_u32 s62, s62, {LV}')
    for n in range(K0, 32):
        kload(n)
        if n == D1: stamp(7)
    for n in range(NL): vload()
    stamp(1)
    lds_spin(C_Q, 4, 4)
    stamp(2)
    A(f'ds_read_b128 {v(QF,4)}, v39 offset:{LQ}')
    A(f'ds_read_b128 {v(QF+4,4)}, v39 offset:{LQ+128}')
    A('s_waitcnt lgkmcnt(0)')
    def qk_fin(b, par):
        c = CT + 4 * par
        A(f'v_cndmask_b32 v{T}, v{c+2}, v{c+1}, s[14:15]')
        A(f'v_cndmask_b32 v{S+b}, v{c}, v{c+3}, s[14:15]')
        A(f'v_add_f32_dpp v{S+b}, v{T}, v{S+b} {X1_} {MK}')
    assert NL >= max(D1, D2)
    order = [(b + NL // 2) % 16 for b in range(16)] if QO else list(range(16))
    if DQ: dq[0] = DQ
    for i, b in enumerate(order):
        c = CT + 4 * (i & 1)
        mfma(c, KB + 8 * b, QF, True)
        mfma(c, KB + 8 * b + 4, QF + 4, False)
        if i >= 1: qk_fin(order[i - 1], (i - 1) & 1)
        if QO:
            if i in ((0, 1, 2, 8, 15) if QO == 1 else (0, 1, 2, 3, 9, 15)): vload()
        elif b - NL // 2 in (0, 1, 2) or b == 13: vload()
    qk_fin(order[15], 1)
    A(f's_mov_b32 s4, {hx(f2u(128 ** -0.5 * (1 if norsc < 2 else 1 - 0.02 * norsc)))}')
    for i in range(0, 16, 2):
        if not norsc: rnd2(S + i, S + i + 1, T + (i // 2) % 2)
        A(f'v_mul_f32 v{S+i}, s4, v{S+i}\nv_mul_f32 v{S+i+1}, s4, v{S+i+1}')
        if not norsc: rnd2(S + i, S + i + 1, T + 2 + (i // 2) % 2)
    M = 12; Lr = 13
    A(f'v_max3_f32 v{M}, v{S}, v{S+1}, v{S+2}')
    for i in range(3, 15, 2): A(f'v_max3_f32 v{M}, v{M}, v{S+i}, v{S+i+1}')
    A(f'v_max_f32 v{M}, v{M}, v{S+15}')
    red('v_max_f32', [M], [X1_, 'p16', 'p32'], [T])
    vload()
    A(f's_mov_b32 s4, {hx(f2u(LOG2E))}')
    for i in range(16): A(f'v_sub_f32 v{S+i}, v{S+i}, v{M}')
    for i in range(16): A(f'v_mul_f32 v{S+i}, s4, v{S+i}')
    for i in range(16): A(f'v_exp_f32 v{S+i}, v{S+i}')
    A(f'v_add_f32 v{Lr}, v{S}, v{S+1}')
    for i in range(2, 16): A(f'v_add_f32 v{Lr}, v{Lr}, v{S+i}')
    if QO: vload()
    for i in range(16): A(f'v_cvt_pk_bf16_f32 v{S+i}, v{S+i}, v{S+i}')
    for i in range(16): A(f'v_and_b32 v{S+i}, v3, v{S+i}')
    red('v_add_f32', [Lr], [X1_, 'p16', 'p32'], [T])
    addr(14, [(0, 6, 4)], [('s6', 0, 3, 64)])
    A('s_mov_b64 exec, 0x5555')
    A(f'ds_write_b64 v14, v[{M}:{Lr}] offset:{LST}')
    A('s_mov_b64 exec, -1')
    vload()
    lds_inc(C_ST, T)
    dq[0] = 0
    stamp(3)
    PT = 4
    if NL:
        wait_load(32 + NL - 1)
        A('v_add_u32 v4, s62, v2')
        for n in range(NL): A(f'ds_read_b128 {v(vslot(n),4)}, v4 offset:{n*1024}')
        A('s_waitcnt lgkmcnt(0)')
    for tau in range(4):
        raw = vslot(8 * tau)
        if tau < 3:
            lim = min(32, 8 * tau + 24)
            while nv[0] < lim and (issued[0] - 1 - (32 + 8 * tau + 7)) < dcur(): vload()
            wait_load(32 + 8 * tau + 7)
            for t in range(4):
                f0 = PT + 8 * (t & 1); f1 = f0 + 4
                perm_pair(f0, f1, raw, t)
                mfma(OA + 8 * t, S + 4 * tau, f0, tau == 0)
                mfma(OA + 8 * t + 4, S + 4 * tau, f1, tau == 0)
        else:
            while nv[0] < 32: vload()
            addr(4, [(4, 2, 1024), (0, 4, 16)], [('s6', 0, 3, NL * 1024)], LV, tmp=5)
            A('v_xor_b32 v5, 128, v4')
            FB = vslot(8)
            for b in range(4):
                wait_load(32 + 24 + 2 * b + 1)
                for t in range(4):
                    X = raw + 8 * b + t; Y = X + 4
                    A(f'v_perm_b32 v{FB+8*t+b}, v{Y}, v{X}, s12')
                    A(f'v_perm_b32 v{FB+8*t+4+b}, v{Y}, v{X}, s13')
            for n in range(8): mfma(OA + 4 * n, S + 12, FB + 4 * n, False)
    W = 40
    for hq in range(2):
        for n in range(4 * hq, 4 * hq + 4):
            A(f'v_add_f32 v{W+n}, v{OA+4*n}, v{OA+4*n+1}')
            A(f'v_add_f32 v{W+8+n}, v{OA+4*n+2}, v{OA+4*n+3}')
        A(f'ds_write_b128 v{4+hq}, {v(W+4*hq,4)} offset:{256*hq}')
        A(f'ds_write_b128 v{4+hq}, {v(W+8+4*hq,4)} offset:{512+256*hq}')
    A('s_waitcnt lgkmcnt(0)')
    stamp(4)
    A('s_barrier')
    A('s_and_b32 s4, s2, 7\ns_cmp_ge_u32 s4, 2\ns_cbranch_scc1 L_s9')
    A('s_cmp_ge_u32 s6, 3\ns_cbranch_scc1 L_s9')
    A('s_load_dword s60, s[42:43], 0')
    srd(44, 42, WS_USED)
    A(f'v_mov_b32 v3, 0xff\ns_mul_i32 s4, s6, 7168\ns_min_u32 s4, s4, {NB*1024-7168}\nv_add_u32 v4, s4, v2\nv_add_u32 v6, {TB}, v4')
    A('s_waitcnt lgkmcnt(0)')
    tags()
    gather(104, 7, 6, [1024 * i for i in range(7)], 5)
    for i in range(7): A(f'ds_write_b128 v4, {v(104+4*i,4)} offset:{LT+1024*i}')
    lds_inc(C_PL, 8)
    A.label('L_s9')
    stamp_flush(8)
    A('s_endpgm')

    A.label('L_ctrl')
    A('s_setprio 3')
    A('v_mov_b32 v3, 0xff')
    HI = (4, 2); LOf = (0, 4)
    CF = 4; PTc = 24; GR = 104; BF = 136; AC2 = 104
    def silu(src, n, dst, tmp):
        A(f's_mov_b32 s4, {hx(f2u(-LOG2E))}')
        m = 2 * n
        for r in range(n): A(f'v_lshlrev_b32 v{tmp+m+2*r}, 16, v{src+r}\nv_and_b32 v{tmp+m+2*r+1}, 0xffff0000, v{src+r}')
        for r in range(m): A(f'v_mul_f32 v{tmp+r}, s4, v{tmp+m+r}')
        for r in range(m): A(f'v_exp_f32 v{tmp+r}, v{tmp+r}')
        for r in range(m): A(f'v_add_f32 v{tmp+r}, 1.0, v{tmp+r}')
        for r in range(m): A(f'v_rcp_f32 v{tmp+r}, v{tmp+r}')
        for r in range(m): A(f'v_mul_f32 v{tmp+r}, v{tmp+r}, v{tmp+m+r}')
        for r in range(n): A(f'v_cvt_pk_bf16_f32 v{dst+r}, v{tmp+2*r}, v{tmp+2*r+1}')
    def tile_mfma(raw, a, AC, first):
        for t in range(4):
            f0 = PTc + 8 * (t & 1); f1 = f0 + 4
            perm_pair(f0, f1, raw, t)
            mfma(AC + 8 * t, a, f0, first)
            mfma(AC + 8 * t + 4, a, f1, first)
    def sigma(a):
        rnd2(a, a + 1, a + 2)
        A(f'v_add_f32 v{a+1}, {hx(f2u(1e-5))}, v{a+1}')
        rnd1(a + 1)
        A(f'v_sqrt_f32 v{a+1}, v{a+1}')
        rnd1(a + 1)
        A(f'v_rcp_f32 v{a+1}, v{a+1}')
    def sumn(dst, n, src=GR):
        for k in range(4): A(f'v_add_f32 v{dst+k}, v{src+k}, v{src+4+k}')
        for i in range(2, n):
            for k in range(4): A(f'v_add_f32 v{dst+k}, v{dst+k}, v{src+4*i+k}')
    def afrag(lo2):
        for k in range(4): A(f'v_mov_b32_dpp v{4+k}, v{lo2+(k&1)} quad_perm:{"[0,0,2,2]" if k < 2 else "[1,1,3,3]"} {MK}')
    def red4_publish(vaddr, lr, rnd=True, fl='sc1'):
        for i in range(4): A(f'ds_read_b128 {v(GR+4*i,4)}, v18 offset:{lr+1024*i}')
        A('s_waitcnt lgkmcnt(0)')
        for k in range(4): A(f'v_add_f32 v{4+k}, v{GR+k}, v{GR+4+k}\nv_add_f32 v{8+k}, v{GR+8+k}, v{GR+12+k}')
        for k in range(4): A(f'v_add_f32 v{4+k}, v{4+k}, v{8+k}')
        embed(8, [4, 5, 6, 7], rnd)
        wsstore(8, vaddr, fl=fl)
    TW = 40; TR = 72; TC = 96; TA = 102; TU = 104; TE = 118
    def tab_load(sidx):
        A(f's_mul_i32 s4, {sidx}, 1792\nv_mul_u32_u24 v4, 28, v0\nv_add_u32 v4, s4, v4')
        if notab & 2: A('v_mov_b32 v4, 0')
        for a_, sp in enumerate(('s[28:29]', 's[30:31]', 's[32:33]')):
            A(f'global_load_dwordx4 {v(TR+8*a_,4)}, v4, {sp}')
            A(f'global_load_dwordx3 {v(TR+8*a_+4,3)}, v4, {sp} offset:16')
    def tab_unpack():
        A('s_waitcnt vmcnt(0)')
        for a in range(3):
            for i in range(7):
                d = TW + 14 * a + 2 * i
                A(f'v_lshlrev_b32 v{d}, 16, v{TR+8*a+i}\nv_and_b32 v{d+1}, 0xffff0000, v{TR+8*a+i}')
        for i in range(7):
            A(f'v_pk_mul_f32 {v(TW+42+2*i,2)}, {v(TW+14+2*i,2)}, {v(TW+28+2*i,2)}')
            A(f'v_pk_mul_f32 {v(TW+28+2*i,2)}, {v(TW+2*i,2)}, {v(TW+28+2*i,2)}')
    ca = -2.0 * 0.7978845608028654 * LOG2E
    def tab_consts():
        A(f'v_mov_b32 v{TC}, {hx(f2u(ca))}\nv_mov_b32 v{TC+1}, {hx(f2u(ca))}')
        A(f'v_mov_b32 v{TC+2}, {hx(f2u(ca*0.044715))}\nv_mov_b32 v{TC+3}, {hx(f2u(ca*0.044715))}')
        A(f'v_mov_b32 v{TC+4}, 1.0\nv_mov_b32 v{TC+5}, 1.0')
    def tab_eval():
        P = lambda r: v(r, 2)
        for i in range(7): A(f'v_pk_fma_f32 {P(TU+2*i)}, {P(TW+2*i)}, s[64:65], {P(TW+14+2*i)}')
        for i in range(7): A(f'v_pk_mul_f32 {P(TE+2*i)}, {P(TU+2*i)}, {P(TU+2*i)}')
        for i in range(7): A(f'v_pk_fma_f32 {P(TE+2*i)}, {P(TE+2*i)}, {P(TC+2)}, {P(TC)}')
        for i in range(7): A(f'v_pk_mul_f32 {P(TE+2*i)}, {P(TE+2*i)}, {P(TU+2*i)}')
        for i in range(14): A(f'v_exp_f32 v{TE+i}, v{TE+i}')
        for i in range(7): A(f'v_pk_fma_f32 {P(TU+2*i)}, {P(TW+28+2*i)}, s[64:65], {P(TW+42+2*i)}')
        for i in range(7): A(f'v_pk_add_f32 {P(TE+2*i)}, {P(TE+2*i)}, {P(TC+4)}')
        for i in range(14): A(f'v_rcp_f32 v{TE+i}, v{TE+i}')
        A(f'v_pk_mul_f32 {P(TA)}, {P(TU)}, {P(TE)}')
        for i in range(1, 7): A(f'v_pk_fma_f32 {P(TA)}, {P(TU+2*i)}, {P(TE+2*i)}, {P(TA)}')
        A(f'v_add_f32 v{TA}, v{TA}, v{TA+1}')
    def tab_to(n, n0=None):
        if n0 is None: A(f's_mov_b32 s5, {n}')
        else: A(f's_cmp_eq_u32 s3, 0\ns_cselect_b32 s5, {n0}, {n}')
        A('s_call_b64 s[68:69], L_tab')
    def pack_afrag(r):
        A(f'v_perm_b32 v12, v{r+1}, v{r}, s13\nv_perm_b32 v13, v{r+3}, v{r+2}, s13')
        afrag(12)
    def embed_bf(dst, srcs):
        for k, s_ in enumerate(srcs): A(f'v_or_b32 v{dst+k}, s{56+k}, v{s_}')
    CG = ('s2', 0, 4); RG = ('s2', 4, 4)
    addr(12, [HI + (8 * 12288,), LOf + (16,)], [T_(RG, 64 * 12288), T_(CG, 256)], tmp=15)
    addr(13, [(2, 1, 2048), HI + (16,)], [T_(RG, 128)], tmp=15)
    A(f'v_mov_b32 v14, 0\nv_lshlrev_b32 v15, 2, v0\ns_mov_b64 exec, 0xffff\nds_write_b32 v15, v14 offset:{LCNT}\ns_mov_b64 exec, -1')
    addr(14, [HI + (8 * 8192,), LOf + (16,)], [('s2', 5, 3, 128 * 8192), T_(CW, 32 * 8192), T_(G_, 1024), ('s2', 3, 2, 256)], tmp=16)
    RG8 = ('s2', 4, 3); CT_ = ('s2', 7, 1)
    addr(17, [HI + (8 * 12288,), LOf + (16,)], [T_(RG8, 128 * 12288), T_(CW, 32 * 12288), T_(CT_, 4096), T_(CG, 256)], 4096, tmp=16)
    A('v_lshlrev_b32 v18, 4, v0')
    A('s_cmp_lt_u32 s2, 64\ns_cselect_b32 s67, s3, 0')
    A('s_waitcnt lgkmcnt(0)')
    if stamps: A(f's_mov_b32 s{SB}, s70')
    srd(48, 38, 12 << 20)
    A('s_cmp_lg_u32 s3, 0\ns_cbranch_scc1 L_c0')
    A(f'global_load_dwordx4 {v(CF,4)}, v13, s[36:37]')
    A(f'global_load_dwordx4 {v(CF+4,4)}, v13, s[36:37] offset:64')
    tile_loads(40, 12, 's[48:51]', 12288, 0)
    tile_loads(136, 12, 's[48:51]', 12288, 32)
    A.label('L_c0')
    XR = 40
    RB = ('s2', 3, 1); RD = ('s2', 4, 2)
    A('s_cmp_lg_u32 s67, 1\ns_cbranch_scc1 L_c1')
    addr(15, [(0, 6, 16)], [T_(RB, 2048)])
    for i in range(2): A(f'global_load_dwordx4 {v(XR+4*i,4)}, v15, s[16:17] offset:{1024*i}')
    addr(15, [(0, 3, 8)], [T_(RB, 2048), T_(G_, 256), T_(RD, 64)], tmp=16)
    A(f'global_load_dwordx2 {v(XR+8,2)}, v15, s[16:17]')
    A.label('L_c1')
    if B0p == 0: A('s_barrier')
    A('s_load_dword s60, s[42:43], 0')
    srd(52, 22, 8 << 20)
    tile_loads(GR, 17, 's[48:51]', 12288)
    if B0p == 1: A('s_barrier')
    A('s_cmp_eq_u32 s3, 0\ns_cbranch_scc1 L_c1b')
    tile_loads(BF, 14, 's[52:55]', 8192)
    A.label('L_c1b')
    if B0p == 2: A('s_barrier')
    A('s_mov_b32 s14, 0\ns_mov_b32 s15, -1')
    srd(44, 42, WS_USED)
    addr(16, [(4, 1, 512), LOf + (32,), (5, 1, 16)], [T_(CW, 1024)], tmp=15)
    A('s_lshl_b32 s4, s3, 10\nv_add_u32 v19, s4, v18')
    A(f's_and_b32 s4, s2, 127\ns_mul_i32 s4, s4, {NB}\ns_add_u32 s4, s4, {E0*128}\ns_lshl_b32 s4, s4, 16\ns_lshr_b32 s5, s2, 7\ns_lshl_b32 s5, s5, 31\ns_or_b32 s64, s4, s5')
    A('s_lshl_b32 s6, s3, 4\ns_mov_b32 s66, 0')
    A('s_waitcnt lgkmcnt(0)')
    tags()
    A('s_cmp_lg_u32 s3, 0\ns_cbranch_scc1 L_c2')
    A('s_waitcnt vmcnt(24)')
    silu(CF, 8, CF, 72)
    sexpr('s4', [T_(CG, 16 * SL), T_(RG, SL)], MODP)
    A('v_add_u32 v12, s4, v18')
    A('s_waitcnt vmcnt(16)')
    tile_mfma(40, CF, 72, True)
    A('s_waitcnt vmcnt(8)')
    tile_mfma(136, CF + 4, 72, False)
    select_out(PTc, 72)
    embed(PTc + 4, range(PTc, PTc + 4))
    wsstore(PTc + 4, 12, fl=LOC)
    tile_loads(BF, 14, 's[52:55]', 8192)
    A.label('L_c2')
    stamp(1)
    addr(13, [(2, 1, 2048), HI + (16,)], [T_(RG8, 256), T_(CW, 64)], tmp=15)
    A('global_load_dwordx4 v[96:99], v13, s[36:37]')
    tab_load('s3')
    A('s_cmp_lg_u32 s67, 1\ns_cbranch_scc1 L_c2b')
    A('s_waitcnt vmcnt(23)')
    XU = 52; LN = 20
    for r in range(8): A(f'v_lshlrev_b32 v{XU+2*r}, 16, v{XR+r}\nv_and_b32 v{XU+2*r+1}, 0xffff0000, v{XR+r}')
    st6 = [X1_, X2_, HM, RM, 'p16', 'p32']
    A(f'v_add_f32 v4, v{XU}, v{XU+1}')
    for i in range(2, 16): A(f'v_add_f32 v4, v4, v{XU+i}')
    red('v_add_f32', [4], st6, [6])
    A(f'v_mul_f32 v4, {hx(f2u(1.0/1024))}, v4')
    A(f'v_sub_f32 v6, v{XU}, v4\nv_mul_f32 v5, v6, v6')
    for i in range(1, 16): A(f'v_sub_f32 v{6+(i&1)}, v{XU+i}, v4\nv_fmac_f32 v5, v{6+(i&1)}, v{6+(i&1)}')
    red('v_add_f32', [5], st6, [6])
    A(f'v_mul_f32 v5, {hx(f2u(1.0/1024))}, v5')
    sigma(4)
    A(f'v_lshlrev_b32 v20, 16, v{XR+8}\nv_and_b32 v21, 0xffff0000, v{XR+8}\nv_lshlrev_b32 v22, 16, v{XR+9}\nv_and_b32 v23, 0xffff0000, v{XR+9}')
    for k in range(4): A(f'v_sub_f32 v{LN+k}, v{LN+k}, v4')
    rnd2(LN, LN + 1, 6); rnd2(LN + 2, LN + 3, 7)
    for k in range(4): A(f'v_mul_f32 v{LN+k}, v{LN+k}, v5')
    rnd2(LN, LN + 1, 6); rnd2(LN + 2, LN + 3, 7)
    A.label('L_c2b')
    A('s_waitcnt vmcnt(6)')
    silu(96, 4, CF, 40)
    tile_mfma(GR, CF, 40, True)
    select_out(8, 40)
    A(f'ds_write_b128 v16, v[8:11] offset:{LRED2}')
    tab_unpack(); tab_consts()
    A('s_cmp_lg_u32 s67, 1\ns_cbranch_scc1 L_c2d')
    addr(4, [(5, 1, 128 * SL), (3, 2, SL), (0, 1, 512), (1, 2, 16)], [T_(G_, 16 * SL), T_(RB, 256), T_(RD, 64)], MODP, tmp=5)
    if r1st == 1: stamp(7)
    gather(GR, 4, 4, [4 * SL * i for i in range(4)], 5, kind=1, net=True)
    if r1st == 1: stamp(8)
    sumn(4, 4)
    red('v_add_f32', [4, 5, 6, 7], [R8, 'p16'], [8, 9, 10, 11])
    rnd2(4, 5, 8); rnd2(6, 7, 9)
    for k in range(4): A(f'v_mov_b32 v{8+k}, v{4+k}')
    for k in range(4): A(f'v_permlane32_swap_b32 v{4+k}, v{8+k}')
    for k in range(4): A(f'v_add_f32 v{8+k}, 1.0, v{8+k}')
    rnd2(8, 9, 13); rnd2(10, 11, 14)
    for k in range(4): A(f'v_mul_f32 v{8+k}, v{8+k}, v{LN+k}')
    rnd2(8, 9, 13); rnd2(10, 11, 14)
    for k in range(4): A(f'v_add_f32 v{8+k}, v{4+k}, v{8+k}')
    rnd2(8, 9, 13); rnd2(10, 11, 14)
    embed_bf(8, [8, 9, 10, 11])
    addr(4, [(0, 6, 16)], [T_(G_, 1024), T_(RB, 512), T_(RD, 128)], HR)
    A('s_mov_b64 exec, 0xff')
    wsstore(8, 4)
    A('s_mov_b64 exec, -1')
    A('s_branch L_c2c')
    A.label('L_c2d')
    tab_to(N1, N10)
    A.label('L_c2c')
    addr(4, [(2, 1, 512), HI + (32,), (0, 1, 16)], [('s2', 5, 3, 1024), T_(CW, 128)], HR, tmp=5)
    if TH_ < 99: lds_spin(C_T1, TGC, 6, sleep=2)
    stamp(2)
    gather(GR, 1, 4, [0], 5, kind=1, net=True)
    stamp(3)
    pack_afrag(GR)
    tile_mfma(BF, 4, AC2, True)
    sexpr('s4', [('s2', 0, 8, SL)], QP)
    A('v_add_u32 v14, s4, v18')
    select_out(8, AC2)
    A(f'ds_write_b128 v16, v[8:11] offset:{LRED}')
    lds_inc(C_P2, 12, rtn=True)
    A('s_cmp_lg_u32 s4, 3\ns_cbranch_scc1 L_c3')
    red4_publish(14, LRED, fl=LOC)
    A.label('L_c3')
    stamp(4)
    tab_to(N2)
    def line_reduce_store(vgaddr, offs, base, fl, GR=GR, **kw):
        n = len(offs)
        gather(GR, n, vgaddr, offs, 5, **kw)
        if n > 1 and r1st == 3:
            stamp(7)
            A(f's_sub_u32 s4, {POLL_LIMIT}, s10\ns_mul_i32 s4, s4, 100\ns_add_u32 s{SB+8}, s{SB+9}, s4')
        if n > 1: sumn(GR, n, GR)
        red('v_add_f32', [GR, GR + 1, GR + 2, GR + 3], [R8, 'p16', 'p32'], [8, 9, 10, 11])
        rnd2(GR, GR + 1, 8); rnd2(GR + 2, GR + 3, 9)
        embed_bf(8, [GR, GR + 1, GR + 2, GR + 3])
        A(f's_mov_b32 s7, {base}\ns_mov_b64 exec, 0xff')
        wsstore(8, 17, 's7', fl)
        A('s_mov_b64 exec, -1')
    addr(17, [(0, 6, 16)], [('s2', 7, 1, 16384), T_(G_, 2048), ('s2', 3, 4, 128)])
    A('s_cmp_lg_u32 s3, 2\ns_cbranch_scc1 L_r2')
    addr(4, [(3, 3, 32 * SL), (0, 3, 16)], [T_(G_, SL), ('s2', 5, 2, 8 * SL), ('s2', 7, 1, 512), ('s2', 3, 2, 128)], QP, tmp=5)
    line_reduce_store(4, [0], Q2, 'sc1', kind=1, net=True)
    A.label('L_r2')
    tab_to(NB)
    if TQ < 99: lds_spin(C_T2, TGC, 6, sleep=2)
    sexpr('s4', [T_(G_, 4096)], Q2)
    A('v_add_u32 v4, s4, v19')
    stamp(5)
    gather(GR, 1, 4, [0], 5, kind=1, net=True)
    A(f'v_perm_b32 v4, v{GR+1}, v{GR}, s13\nv_perm_b32 v5, v{GR+3}, v{GR+2}, s13')
    A('v_lshrrev_b32 v6, 1, v19')
    A(f'ds_write_b64 v6, v[4:5] offset:{LQ}')
    lds_inc(C_Q, 8)
    stamp(6)
    lds_inc(C_TB, 4, rtn=True)
    A('s_cmp_lg_u32 s4, 3\ns_cbranch_scc1 L_c3d')
    A(f's_mov_b64 exec, {(1 << (NB//4)) - 1}')
    A('v_lshlrev_b32 v4, 8, v0')
    for i in range(16): A(f'ds_read_b128 {v(40+4*i,4)}, v4 offset:{LTP+16*i}')
    A(f's_mul_i32 s4, s2, {NB*4}\ns_add_u32 s4, s4, {TB}\nv_add_u32 v12, s4, v18')
    A('s_waitcnt lgkmcnt(0)')
    for k in range(4):
        A(f'v_add_f32 v{4+k}, v{40+16*k}, v{41+16*k}')
        for i in range(2, 16): A(f'v_add_f32 v{4+k}, v{4+k}, v{40+16*k+i}')
    embed(8, [4, 5, 6, 7])
    wsstore(8, 12)
    A('s_mov_b64 exec, -1')
    A.label('L_c3d')
    if not r1st: stamp(7)
    W2R = 40; BF = 72; AC2 = 40
    if cpf:
        A('s_cmp_lg_u32 s3, 2\ns_cbranch_scc1 L_cpf')
        A('s_getpc_b64 s[8:9]')
        A.label('L_pc')
        A(f's_lshr_b32 s4, s2, 3\ns_and_b32 s4, s4, 15\ns_lshl_b32 s4, s4, 10\ns_min_u32 s4, s4, L_codeend-L_pc-1024\nv_add_u32 v4, s4, v18')
        A('global_load_dwordx4 v[144:147], v4, s[8:9]')
        A.label('L_cpf')
    HH = lambda m: [T_(G_, 4 * m), ('s2', 3, 2, m)]
    CC = ('s2', 5, 3); GG = ('s2', 1, 2)
    HL = lambda m: [('s2', 0, 1, 4 * m), ('s2', 3, 2, m)]
    B_ = ('s2', 0, 1)
    srd(52, 24, 8 << 20)
    addr(33, [HI + (8 * 2048,), LOf + (16,)], HH(128 * 2048) + [T_(CW, 32 * 2048), T_(CC, 256)], tmp=4)
    addr(27, [(0, 6, 16)], [T_(G_, 32 * SL), T_(C_, SL), T_(CW, 1024)], OP, tmp=4)
    addr(28, [(5, 1, 32)], [T_(CW, 64)], tmp=4)
    addr(31, [(1, 5, SL), (0, 1, 16)], [T_(G_, 32 * SL), T_(C_, 128), T_(CW, 32)], OP, tmp=4)
    addr(29, [(2, 1, 512 * OST), HI + (OST,), (0, 1, 16)], [T_(GG, 128 * OST)] + HL(16 * OST) + [T_(CW, 4 * OST)], O2, tmp=4)
    addr(17, [(0, 3, 16), (5, 1, 8)], [T_(G_, 128 * OST), T_(C_, 4 * OST), T_(CW, OST)], O2, tmp=4)
    sexpr('s4', HH(8 * SL) + [T_(CC, SL)], AP)
    A('v_add_u32 v30, s4, v18')
    sexpr('s4', [T_(CT_, 128 * SL), T_(CG, 8 * SL), T_(RG8, SL)], MODR)
    A('v_add_u32 v32, s4, v18')
    addr(36, [(0, 3, 8), (4, 1, 4), (5, 1, 2)], [T_(B_, 2048), T_(C_, 64)], tmp=4)
    addr(26, [(5, 1, 16), (0, 2, 32)], [T_(B_, 4096), T_(C_, 128)], tmp=4)
    addr(37, [(5, 1, 16), (0, 5, 128)], [T_(B_, 4096)], tmp=4)
    addr(38, [(3, 3, 8 * SL), (0, 3, 16)], [T_(CC, SL), T_(B_, 512), ('s2', 3, 2, 128)], AP, tmp=4)
    addr(34, [(3, 3, SL), (0, 3, 16)], [T_(CC, 8 * SL), T_(B_, 512), ('s2', 3, 2, 128)], MODR, tmp=4)
    GA = 20; SBr = 21; Ur = 22; GB = 23; XO = 24; B2r = 25; CU = 48
    A('s_cmp_lg_u32 s3, 1\ns_cbranch_scc1 L_c4')
    A(f'global_load_ushort v{XO}, v36, s[16:17]')
    A(f'v_mov_b32 v7, 0\nglobal_load_ushort v{B2r}, v7, s[34:35]')
    A.label('L_c4')
    def sums_publish(r, base):
        tred(32, [(r, r + 3), (r + 1, r + 4), (r + 2, r + 5)])
        A(f'v_mov_b32 v{r+3}, s60')
        red('v_add_f32', [r, r + 1, r + 2], [X1_, X2_, HM])
        for j in range(3): A(f'v_add_f32_dpp v{r+j}, v{r+j}, v{r+j} row_bcast:15 row_mask:0xa bank_mask:0xf')
        A(f's_mov_b32 s7, {base}\ns_mov_b32 exec_lo, 0xf0000\ns_mov_b32 exec_hi, 0xf0000')
        locstore(r, 26, 's7')
        A('s_mov_b64 exec, -1')
    A('s_cmp_lg_u32 s3, 3\ns_cbranch_scc1 L_c5')
    lds_spin(C_ST, 8, 4, sleep=4)
    A(f'v_lshlrev_b32 v4, 3, v0\nds_read_b64 v[8:9], v4 offset:{LST}')
    A(f's_mov_b32 s7, {hx(f2u(LOG2E))}')
    A('s_waitcnt lgkmcnt(0)')
    A('v_mov_b32 v4, v8\nv_mov_b32 v39, v8')
    red('v_max_f32', [4], [R8, 'p16', 'p32'], [6])
    A('v_sub_f32 v5, v8, v4\nv_mul_f32 v5, s7, v5\nv_exp_f32 v5, v5\nv_mul_f32 v5, v5, v9')
    red('v_add_f32', [5], [R8, 'p16', 'p32'], [6])
    A('s_getreg_b32 s67, hwreg(HW_REG_XCC_ID, 0, 4)')
    A(f'v_mov_b32 v6, s67\nv_mov_b32 v7, s60')
    addr(12, [(0, 6, 16)], [T_(G_, 4096), T_(C_, 128)], ST)
    A('s_mov_b64 exec, 0xff')
    wsstore(4, 12, fl=LOC)
    A('s_mov_b64 exec, -1')
    addr(12, [(0, 6, 16)], [T_(G_, 4096)], ST)
    lds_spin(C_V, 8, 8, sleep=4)
    gather(GR, 4, 12, [1024 * i for i in range(4)], 8, full=True, net=True)
    for i in range(4): A(f'v_xor_b32 v{GR+4*i+2}, s67, v{GR+4*i+2}')
    A(f'v_or3_b32 v4, v{GR+2}, v{GR+6}, v{GR+10}\nv_or_b32 v4, v4, v{GR+14}\nv_cmp_ne_u32 vcc, 0, v4')
    A('s_or_b32 s4, vcc_lo, vcc_hi\nv_mov_b32 v4, s4\nv_mov_b32 v5, 0')
    A(f'ds_write_b32 v5, v4 offset:{C_H}')
    A(f'v_max3_f32 v4, v{GR}, v{GR+4}, v{GR+8}\nv_max_f32 v4, v4, v{GR+12}')
    red('v_max_f32', [4], [R8, 'p16', 'p32'], [6])
    for i in range(4): A(f'v_sub_f32 v{8+i}, v{GR+4*i}, v4')
    for i in range(4): A(f'v_mul_f32 v{8+i}, s7, v{8+i}')
    for i in range(4): A(f'v_exp_f32 v{8+i}, v{8+i}')
    A(f'v_mul_f32 v5, v8, v{GR+1}')
    for i in range(1, 4): A(f'v_fmac_f32 v5, v{8+i}, v{GR+4*i+1}')
    red('v_add_f32', [5], [R8, 'p16', 'p32'], [6])
    A('v_rcp_f32 v5, v5\nv_sub_f32 v6, v39, v4\nv_mul_f32 v6, s7, v6\nv_exp_f32 v6, v6\nv_mul_f32 v6, v6, v5')
    addr(7, [(0, 3, 32), (3, 3, 4)], tmp=8)
    A(f'ds_write_b32 v7, v6 offset:{LF}')
    A.label('L_c5')
    if not r1st: stamp(8)
    lds_spin(C_XS, 8, 4, sleep=2)
    if PT1 == 1: A('s_cmp_lg_u32 s3, 2\ns_cbranch_scc1 L_pre1')
    if PT1 < 2: wsload(136, 31, 0)
    if PT1 >= 5:
        m_ = {5: 0x01010101, 6: 0x00010001, 7: 0x11111111}[PT1]
        A(f's_cmp_lg_u32 s3, 2\ns_cbranch_scc1 L_pre1\ns_mov_b32 exec_lo, {m_}\ns_mov_b32 exec_hi, {m_ | 0x40000000}')
        wsload(136, 31, 0)
        A('s_mov_b64 exec, -1')
    if PT1 in (3, 4): A(f'buffer_load_dwordx4 v[136:139], v27, s[44:47], 0 offen {"nt" if PT1 == 3 else "sc1"}')
    A.label('L_pre1')
    A('s_cmp_lg_u32 s3, 1\ns_cbranch_scc1 L_pre2')
    A('s_and_b32 s4, s2, 7\ns_cmp_ge_u32 s4, 2\ns_cbranch_scc1 L_pre2')
    wsload(140, 37, XS); wsload(144, 37, CS)
    A.label('L_pre2')
    def mr_pub():
        A('s_cmp_lg_u32 s3, 0\ns_cbranch_scc1 L_pre3')
        lds_spin(C_TB, 4, 4)
        red4_publish(32, LRED2, False)
        A.label('L_pre3')
    if MRP == 0: mr_pub()
    if O1:
        addr(39, [(0, 1, 16), (5, 1, 8)], [T_(CW, 32)], tmp=4)
        addr(17, [(0, 6, 16)], [T_(G_, 4096), T_(C_, 128)], O2)
    lds_spin(C_WO, WOC, 4, sleep=2)
    tile_loads(W2R, 33, 's[52:55]', 2048)
    if MRP == 1: mr_pub()
    addr(2, [(5, 1, 512), (1, 4, 16)], [T_(CW, 1024)], LV, tmp=1)
    A(f'v_and_b32 v1, 1, v0\nv_mul_u32_u24 v1, 384, v1\nv_xor_b32 v2, v2, v1\nv_add_u32 v1, {4*NL*1024}, v2')
    A('v_mov_b32 v35, 0\ns_waitcnt lgkmcnt(0)')
    A('s_barrier')
    stamp(9)
    A(f'ds_read_b32 v35, v35 offset:{C_H}')
    A(f'ds_read_b128 v[4:7], v28 offset:{LF}\nds_read_b128 v[8:11], v28 offset:{LF+16}')
    for w in range(8): A(f'ds_read_b128 {v(GR+4*w,4)}, v{2 if w < 4 else 1} offset:{NL*1024*(w%4)}')
    for w in range(8):
        A(f's_waitcnt lgkmcnt({7-w})')
        if w == 1: A('v_readfirstlane_b32 s67, v35')
        sel = 'op_sel:[0,1,0] op_sel_hi:[1,1,1]' if w & 1 else 'op_sel:[0,0,0] op_sel_hi:[1,0,1]'
        for k in (0, 2):
            if w == 0: A(f'v_pk_mul_f32 {v(12+k,2)}, {v(GR+k,2)}, v[4:5] op_sel_hi:[1,0]')
            else: A(f'v_pk_fma_f32 {v(12+k,2)}, {v(GR+4*w+k,2)}, {v(4+(w&~1),2)}, {v(12+k,2)} {sel}')
    embed(4, [12, 13, 14, 15], False)
    locstore(4, 27)
    A('v_mov_b32 v9, s60\nv_mov_b32 v10, 0\nv_mov_b32 v11, 1')
    spin(136, 31, [0], 12, net=True, sleep=OS)
    if r1st == 3: stamp(7)
    tred(32, [(136, 138), (137, 139)])
    tred(16, [(136, 137)])
    red('v_add_f32', [136], ['row_ror:2', 'row_ror:4', R8])
    A('v_mov_b32 v137, v136\nv_permlane16_swap_b32 v136, v137\nv_cvt_pk_bf16_f32 v8, v136, v137')
    A(f's_mov_b32 exec_lo, {255 if O2F else 3}\ns_mov_b32 exec_hi, {255 if O2F else 3}')
    if O1:
        A(f'ds_write_b64 v39, v[8:9] offset:{LXS}\ns_mov_b64 exec, 1\nds_add_rtn_u32 v11, v10, v11 offset:{C_O}\ns_mov_b64 exec, 0xff')
        A(f'ds_read_b128 v[4:7], v18 offset:{LXS}\ns_waitcnt lgkmcnt(0)\nv_readfirstlane_b32 s4, v11\ns_cmp_lg_u32 s4, 3\ns_cbranch_scc1 L_o1')
        A('buffer_store_dwordx4 v[4:7], v17, s[44:47], 0 offen sc1')
        A.label('L_o1')
    elif not abl & 32: A('buffer_store_dwordx2 v[8:9], v17, s[44:47], 0 offen sc1')
    A('s_mov_b64 exec, -1')
    stamp(10)
    if MRP == 2: mr_pub()
    perm_all(BF, W2R)
    spin(GR, 29, [0], 12, full=2, sleep=GS)
    stamp(11)
    for k in range(4): A(f'v_mov_b32_dpp v{4+k}, v{GR+2*(k&1)} quad_perm:{"[0,0,2,2]" if k < 2 else "[1,1,3,3]"} {MK}')
    for n in range(8): mfma(AC2 + 4 * n, 4, BF + 4 * n, True)
    select_out(8, AC2)
    A(f'ds_write_b128 v16, v[8:11] offset:{LRED}')
    A('s_waitcnt lgkmcnt(0)')
    A('s_barrier')
    A('s_cmp_lg_u32 s3, 0\ns_cbranch_scc1 L_c6')
    red4_publish(30, LRED, False)
    A.label('L_c6')
    A('s_and_b32 s4, s2, 7\ns_cmp_ge_u32 s4, 2\ns_cbranch_scc1 L_c7')
    A('s_cmp_eq_u32 s3, 1\ns_cbranch_scc1 L_fin')
    A('s_cmp_lg_u32 s3, 2\ns_cbranch_scc1 L_c7')
    def sums_get(base, d0, mid=None):
        spin(GR, 37, [base], 12, full=1, mid=mid)
        red('v_add_f32', [GR, GR + 1, GR + 2], [X1_, X2_, HM, RM, 'p16'], [GR + 4, GR + 5, GR + 6])
        for j in range(3): A(f'v_mul_f32 v{d0+j}, {hx(f2u(1.0/1024))}, v{GR+j}\nv_mul_f32 v{d0+3+j}, {hx(f2u(1.0/1024))}, v{GR+j}')
        for j in range(3): A(f'v_permlane32_swap_b32 v{d0+j}, v{d0+3+j}')
    spin(GR, 34, [m * 64 * SL for m in range(4)], 5)
    tred(32, [(GR + 4 * m + 2 * j, GR + 4 * m + 2 * j + 1) for m in range(4) for j in range(2)])
    tred(16, [(GR + 4 * m, GR + 4 * m + 2) for m in range(4)])
    for m in range(4): A(f'v_add_f32_dpp v{GA+m}, v{GR+4*m}, v{GR+4*m} {R8} {MK}')
    rnd2(GA, SBr, 4); rnd2(Ur, GB, 5)
    A(f'v_add_f32 v{Ur}, 1.0, v{Ur}'); rnd1(Ur)
    A(f'ds_write_b128 v18, {v(GA,4)} offset:{LRED2}')
    lds_inc(C_MR, 12)
    A(f'v_mov_b32 v4, v{Ur}\nv_mul_f32 v5, v{Ur}, v{Ur}\nv_mul_f32 v6, v{Ur}, v{SBr}\nv_mov_b32 v7, v{SBr}\nv_mul_f32 v8, v{SBr}, v{SBr}\nv_mov_b32 v9, 0')
    sums_publish(4, CS)
    sums_get(CS, CU)
    A(f'v_mov_b32 v4, 0\ns_mov_b64 exec, 1\nds_write_b128 v4, {v(CU,4)} offset:{LRED2+1024}\nds_write_b32 v4, v{CU+4} offset:{LRED2+1040}\ns_mov_b64 exec, -1')
    lds_spin(C_PL, 3, 12)
    lds_inc(C_MR, 12)
    A.label('L_c7')
    stamp(12)
    stamp_flush(13)
    A('s_endpgm')
    A.label('L_fin')
    A(f'v_lshlrev_b32 v{XO}, 16, v{XO}\nv_lshlrev_b32 v{B2r}, 16, v{B2r}')
    lds_spin(C_MR, 1, 12, sleep=0)
    A(f'ds_read_b128 {v(GA,4)}, v18 offset:{LRED2}')
    spin(GR, 38, [64 * SL * i for i in range(4)], 12)
    stamp(12)
    for k in range(4): A(f'v_add_f32 v{4+k}, v{GR+k}, v{GR+4+k}\nv_add_f32 v{8+k}, v{GR+8+k}, v{GR+12+k}')
    for k in range(4): A(f'v_add_f32 v{4+k}, v{4+k}, v{8+k}')
    tred(32, [(4, 5), (6, 7)]); tred(16, [(4, 6)]); red('v_add_f32', [4], [R8])
    if FS: A(f's_waitcnt lgkmcnt(0)\nv_fmac_f32 v{XO}, v4, v{GA}')
    else:
        rnd1(4)
        A(f's_waitcnt lgkmcnt(0)\nv_mul_f32 v4, v4, v{GA}'); rnd1(4)
        A(f'v_add_f32 v{XO}, v{XO}, v4'); rnd1(XO)
    A(f'v_mov_b32 v4, v{XO}\nv_mul_f32 v5, v{XO}, v{XO}\nv_mul_f32 v6, v{XO}, v{Ur}\nv_mul_f32 v7, v6, v6\nv_mul_f32 v8, v6, v{Ur}\nv_mul_f32 v9, v6, v{SBr}')
    sums_publish(4, XS)
    def consts():
        lds_spin(C_MR, 2, 12, sleep=0)
        A(f's_mov_b32 s10, {POLL_LIMIT}')
        A(f'ds_read_b128 {v(CU,4)}, v13 offset:{LRED2+1024}\nds_read_b32 v{CU+4}, v13 offset:{LRED2+1040}')
    sums_get(XS, 40, consts)
    A('s_waitcnt lgkmcnt(0)')
    stamp(13)
    if FS:
        A(f'v_fma_f32 v5, -v40, v40, v41\nv_fma_f32 v42, -v40, v{CU}, v42\nv_max_f32 v5, 0, v5\nv_mul_f32 v10, v40, v{CU+1}')
        A(f'v_add_f32 v5, {hx(f2u(1e-5))}, v5\nv_fma_f32 v45, -v40, v{CU+2}, v45\nv_rsq_f32 v5, v5\nv_fma_f32 v10, -2.0, v44, v10')
        A(f'v_sub_f32 v12, v{XO}, v40\nv_fma_f32 v43, v40, v10, v43\nv_add_f32 v45, v45, v45\nv_mul_f32 v12, v12, v{Ur}')
        A(f'v_fma_f32 v8, v5, v42, v{CU+3}\nv_fma_f32 v43, v43, v5, v45\nv_fma_f32 v12, v12, v5, v{SBr}\nv_fma_f32 v9, v43, v5, v{CU+4}')
        A(f'v_fma_f32 v9, -v8, v8, v9\nv_sub_f32 v12, v12, v8\nv_max_f32 v9, 0, v9\nv_add_f32 v9, {hx(f2u(1e-5))}, v9\nv_rsq_f32 v9, v9')
        A(f'v_fmac_f32 v{XO}, v{B2r}, v{GB}')
        A('v_mul_f32 v12, v12, v9'); rnd1(12)
    else:
        A('v_mov_b32 v4, v40\nv_fma_f32 v5, -v40, v40, v41\nv_max_f32 v5, 0, v5')
        sigma(4)
        A(f'v_fma_f32 v42, -v4, v{CU}, v42')
        A(f'v_fma_f32 v45, -v4, v{CU+2}, v45')
        A(f'v_mul_f32 v10, v4, v{CU+1}\nv_fma_f32 v10, -2.0, v44, v10\nv_fma_f32 v43, v4, v10, v43')
        A(f'v_sub_f32 v12, v{XO}, v4'); rnd1(12)
        A(f'v_fma_f32 v8, v5, v42, v{CU+3}')
        A(f'v_mul_f32 v43, v43, v5\nv_fma_f32 v43, 2.0, v45, v43\nv_fma_f32 v9, v43, v5, v{CU+4}')
        A('v_mul_f32 v12, v12, v5'); rnd1(12)
        A('v_fma_f32 v9, -v8, v8, v9\nv_max_f32 v9, 0, v9')
        A(f'v_mul_f32 v12, v12, v{Ur}'); rnd1(12)
        sigma(8)
        A(f'v_add_f32 v12, v12, v{SBr}'); rnd1(12)
        A('v_sub_f32 v12, v12, v8'); rnd1(12)
        A('v_mul_f32 v12, v12, v9'); rnd1(12)
    A(f'v_bfe_u32 v13, v12, 16, 15\nv_subrev_u32 v13, {E0*128}, v13\nv_lshrrev_b32 v14, 31, v12')
    A(f'v_cmp_lt_u32 vcc, {NB*128-1 if not force_fb else 128*17}, v13')
    A(f'v_min_u32 v13, {NB*128-1}, v13\nv_mul_u32_u24 v14, {NB*128}, v14\nv_add_lshl_u32 v13, v13, v14, 2')
    A(f'ds_read_b32 v15, v13 offset:{LT}')
    if not abl: A('s_cbranch_vccnz L_fb0')
    A.label('L_nofb')
    A('s_waitcnt lgkmcnt(0)')
    if FS: A(f'v_fma_f32 v15, v15, v{GB}, v{XO}')
    else:
        rnd1(15)
        A(f'v_add_f32 v15, v15, v{B2r}'); rnd1(15)
        A(f'v_mul_f32 v15, v15, v{GB}'); rnd1(15)
        A(f'v_add_f32 v15, v15, v{XO}')
    A('v_cvt_pk_bf16_f32 v15, v15, v15')
    A('s_mov_b32 exec_lo, 0x00ff00ff\ns_mov_b32 exec_hi, 0x00ff00ff')
    A('global_store_short v36, v15, s[40:41]')
    A('s_cmp_lg_u32 s2, 0\ns_cbranch_scc1 L_f2')
    A('v_mov_b32 v4, 0\nv_mov_b32 v5, s60\ns_mov_b64 exec, 1')
    A('buffer_store_dword v5, v4, s[44:47], 0 offen' + (' sc1' if GSC else ''))
    if hold:
        A.label('L_hold')
        A(f's_memrealtime s[72:73]\ns_waitcnt lgkmcnt(0)\ns_sub_u32 s4, s72, s70\ns_cmp_lt_u32 s4, {hold*100}\ns_cbranch_scc1 L_hold')
    A.label('L_f2')
    if stamps: A(f's_memrealtime s[70:71]\ns_waitcnt lgkmcnt(0)\ns_mov_b32 s{SB+1}, s70')
    stamp_flush(14)
    A.label('L_end')
    A('s_endpgm')
    for X, Y, E, net in cold:
        A.label(X)
        A(f's_cmp_eq_u32 s10, 0\ns_cbranch_scc1 {X}e')
        if net: A('buffer_wbl2 sc1\ns_waitcnt vmcnt(0)\nbuffer_inv sc1\ns_waitcnt vmcnt(0)')
        A(f's_branch {Y}')
        A.label(X + 'e')
        A(f's_waitcnt vmcnt(0)\ns_branch {E}')
    A.label('L_fb0')
    A('s_mov_b64 s[66:67], vcc')
    A('s_waitcnt lgkmcnt(0)')
    tab_consts()
    A.label('L_fb')
    A('s_ff1_i32_b64 s4, s[66:67]')
    A('v_readlane_b32 s64, v12, s4')
    A('s_mov_b32 s6, 0\nv_mov_b32 v13, 0')
    A('s_mov_b32 s65, s64')
    A.label('L_fb2')
    tab_load('s6'); tab_unpack(); tab_eval()
    A(f'v_add_f32 v13, v13, v{TA}')
    A('s_add_u32 s6, s6, 1\ns_cmp_lt_u32 s6, 4\ns_cbranch_scc1 L_fb2')
    red('v_add_f32', [13], [X1_, X2_, HM, RM, 'p16', 'p32'], [14])
    A('v_cmp_eq_u32 vcc, s64, v12')
    A('v_cndmask_b32 v15, v15, v13, vcc')
    A('s_andn2_b64 s[66:67], s[66:67], vcc')
    A('s_cbranch_scc1 L_fb')
    A('s_branch L_nofb')
    A.label('L_tab')
    A('s_cmp_ge_u32 s66, s5\ns_cbranch_scc1 L_tabx')
    A('s_setprio 0')
    A.label('L_tab1')
    A('s_mov_b32 s65, s64')
    if notab & 1: A('s_sleep 9')
    else: tab_eval()
    A('v_lshrrev_b32 v4, 2, v0\nv_add_u32 v4, s6, v4')
    red('v_add_f32', [TA], [X1_, X2_, HM, RM])
    A('s_mov_b32 exec_lo, 0x00010001\ns_mov_b32 exec_hi, 0x00010001')
    A(f'ds_write_b32 v4, v{TA} offset:{LTP}')
    A('s_mov_b64 exec, -1')
    A('s_add_u32 s6, s6, 64\ns_add_u32 s64, s64, 0x10000\ns_add_u32 s66, s66, 1\ns_cmp_lt_u32 s66, s5')
    A('s_cbranch_scc1 L_tab1')
    A('s_setprio 3')
    A.label('L_tabx')
    A('s_setpc_b64 s[68:69]')
    A.label('L_codeend')
    A.raw('.section .rodata,"a"'); A.raw('.p2align 6'); A.raw(f'.amdhsa_kernel {KN}')
    A.raw('  .amdhsa_next_free_vgpr 168'); A.raw('  .amdhsa_next_free_sgpr 102'); A.raw('  .amdhsa_accum_offset 168')
    A.raw('  .amdhsa_group_segment_fixed_size 0'); A.raw('  .amdhsa_kernarg_size 120'); A.raw('  .amdhsa_user_sgpr_count 2')
    A.raw('  .amdhsa_user_sgpr_kernarg_segment_ptr 1'); A.raw('  .amdhsa_system_sgpr_workgroup_id_x 1'); A.raw('.end_amdhsa_kernel')
    return A.text()

if __name__ == '__main__':
    open('k16.s', 'w').write(gen())
    open('k16_st.s', 'w').write(gen(stamps=1))
    open('k16_fb.s', 'w').write(gen(force_fb=1))
```

```python
import sys, struct
from asmlib import Asm
KN = 'adaLN_cond__gqa_block_cached__mixer_token_mlp__decode_kernel'

def f2u(x): return struct.unpack('<I', struct.pack('<f', x))[0]
def hx(x): return '0x%08x' % (x & 0xffffffff)
LOG2E = 1.4426950408889634
STAMP_OFF = 200 << 20
LQ = 0; LST = 2048; LF = 2560; LCNT = 2816; LXS = 2880; LRED = 3072; LTP = 7168; LRED2 = 9216; LT = 13312
C_P2, C_Q, C_ST, C_XS, C_TB, C_WO, C_V, C_PL, C_MR, C_H, C_T1, C_T2, C_O, C_F = [LCNT + 4 * i for i in range(14)]
NB = 20; E0 = 111
LV = LT + NB * 1024
POLL_LIMIT = 131072
HEADER = """; adaLN -> GQA decode attention -> out-proj -> adaLN -> token-mixer MLP, one persistent launch.
"""
def v(a, n=1): return f'v{a}' if n == 1 else f'v[{a}:{a+n-1}]'
def log2(x):
    l = x.bit_length() - 1
    return l if (1 << l) == x else None

def gen(stamps=0, D1=3, D2=3, D3=4, N3=24, STAT=20, force_fb=0, abl=0, N1=13, N10=10, N2=15,
        ROT=0, GRP=0, SL=8448, cpf=1, OS=0, GS=0, nost=0, NET=128, loc=1, r1st=0, NL=14, cpf0=1, tlb=0, K0=3, B0e=0,
        WOAT=31, WOC=8, PREAT=31, MRP=2, PT1=1, O2F=0, OST=32, hold=0, TH_=16, TQ=38, TGC=8, O1=1, PR=99, DQ=0, QO=0, norsc=0, FS=1, GSC=0, notab=0, DA=0, NA0=0, NA1=0, ALT=0, PACE=0, B0p=2, enc=-1, PLD=1):
    ST = 0x8000; CS = 0x10000; XS = 0x12000; HR = 0x14000; TB = 0x18000; Q2 = 0x20000; O2 = 0x40000
    SLOT = 0x60000
    MODP = SLOT; QP = SLOT + 1024; MODR = SLOT + 2048; AP = SLOT + 3072; OP = SLOT + 4096
    WS_USED = SLOT + 256 * SL
    LOC = '' if loc else 'sc1'
    A = Asm()
    A.raw(HEADER.rstrip())
    A.raw(f'; @launch grid=(256,1,1) block=(768,1,1) lds={LV + 8 * NL * 1024}')
    A.raw('.amdgcn_target "amdgcn-amd-amdhsa--gfx950"')
    A.raw('.text'); A.raw(f'.globl {KN}'); A.raw('.p2align 8'); A.raw(f'.type {KN},@function'); A.raw(f'{KN}:')
    SB = 72
    def stamp(i):
        if enc == i: A('s_memrealtime s[74:75]\ns_waitcnt lgkmcnt(0)')
        if stamps: A(f's_memrealtime s[70:71]\ns_waitcnt lgkmcnt(0)\ns_mov_b32 s{SB+i}, s70')
    def stamp_flush(n):
        if not stamps: return
        A('s_waitcnt lgkmcnt(0) vmcnt(0)')
        A('s_mov_b64 exec, 1')
        A(f's_mul_i32 s4, s2, 12\ns_add_u32 s4, s4, s3\ns_lshl_b32 s4, s4, 7\ns_add_u32 s4, s4, {STAMP_OFF}')
        A('v_mov_b32 v1, s4\nv_mov_b32 v3, 0')
        for i in range(n):
            A(f'v_mov_b32 v2, s{SB+i}')
            A(f'global_store_dwordx2 v1, v[2:3], s[42:43] offset:{8*i}')
            A('s_nop 1')
    def sexpr(dst, terms, const=0, tmp='s5'):
        first = True
        for src, pos, n, mult in terms:
            t = dst if first else tmp
            A(f's_bfe_u32 {t}, {src}, {hex((n << 16) | pos)}')
            if mult != 1:
                l = log2(mult)
                A(f's_lshl_b32 {t}, {t}, {l}' if l is not None else f's_mul_i32 {t}, {t}, {mult}')
            if not first: A(f's_add_u32 {dst}, {dst}, {tmp}')
            first = False
        if first: A(f's_mov_b32 {dst}, {const}')
        elif const: A(f's_add_u32 {dst}, {dst}, {const}')
    def addr(dst, lane, sterms=(), const=0, tmp=None):
        has_s = bool(sterms) or const
        if has_s: sexpr('s4', sterms, const)
        acc = None
        for pos, n, mult in lane:
            l = log2(mult)
            t = dst if acc is None and not has_s else tmp
            if pos == 0 and n == 6: src = 'v0'
            elif pos + n == 6: A(f'v_lshrrev_b32 v{t}, {pos}, v0'); src = f'v{t}'
            elif pos == 0: A(f'v_and_b32 v{t}, {(1<<n)-1}, v0'); src = f'v{t}'
            else: A(f'v_bfe_u32 v{t}, v0, {pos}, {n}'); src = f'v{t}'
            prev = acc if acc is not None else ('s4' if has_s else None)
            if prev is None:
                A(f'v_lshlrev_b32 v{dst}, {l}, {src}' if l is not None else f'v_mul_u32_u24 v{dst}, {mult}, {src}')
            elif l is not None:
                A(f'v_lshl_add_u32 v{dst}, {src}, {l}, {prev}')
            else:
                A(f'v_mul_u32_u24 v{t}, {mult}, {src}\nv_add_u32 v{dst}, {prev}, v{t}')
            acc = f'v{dst}'
    def rnd2(a, b, tmp):
        A(f'v_cvt_pk_bf16_f32 v{tmp}, v{a}, v{b}\nv_lshlrev_b32 v{a}, 16, v{tmp}\nv_and_b32 v{b}, 0xffff0000, v{tmp}')
    def rnd1(a):
        A(f'v_cvt_pk_bf16_f32 v{a}, v{a}, v{a}\nv_and_b32 v{a}, 0xffff0000, v{a}')
    MK = 'row_mask:0xf bank_mask:0xf'
    X1_ = 'quad_perm:[1,0,3,2]'; X2_ = 'quad_perm:[2,3,0,1]'; HM = 'row_half_mirror'; RM = 'row_mirror'; R8 = 'row_ror:8'
    def red(op, regs, steps, tmp=None):
        for s in steps:
            if s in ('p16', 'p32'):
                for r, t in zip(regs, tmp): A(f'v_mov_b32 v{t}, v{r}')
                for r, t in zip(regs, tmp): A(f'v_permlane{s[1:]}_swap_b32 v{r}, v{t}')
                for r, t in zip(regs, tmp): A(f'{op} v{r}, v{r}, v{t}')
            else:
                for r in regs: A(f'{op}_dpp v{r}, v{r}, v{r} {s} {MK}')
    def tred(kind, pairs):
        for a, b in pairs: A(f'v_permlane{kind}_swap_b32 v{a}, v{b}')
        for a, b in pairs: A(f'v_add_f32 v{a}, v{a}, v{b}')
    def embed(dst, srcs, rnd=True):
        if rnd:
            for k, s in enumerate(srcs): A(f'v_add_u32 v{dst+k}, 0x80, v{s}')
            srcs = range(dst, dst + 4)
        for k, s in enumerate(srcs): A(f'v_bfi_b32 v{dst+k}, v3, s{56+k}, v{s}')
    def wsload(r, vaddr, o):
        so = o & ~0xfff; io = o & 0xfff
        if so: A(f's_mov_b32 s11, {so}')
        A(f'buffer_load_dwordx4 {v(r,4)}, v{vaddr}, s[44:47], {"s11" if so else "0"} offen offset:{io} sc1')
    mk = lambda i: f's[{86+2*i}:{87+2*i}]'
    def check(r, i, tmp, full):
        if full == 2:
            A(f'v_xor_b32 v{tmp}, s60, v{r+1}\nv_bitop3_b32 v{tmp}, v{tmp}, v{r+3}, s60 bitop3:0xf6\nv_cmp_ne_u32 {mk(i)}, 0, v{tmp}')
        elif full: A(f'v_cmp_ne_u32 {mk(i)}, s60, v{r+3}')
        else:
            for k in range(4): A(f'v_xor_b32 v{r+k}, s{56+k}, v{r+k}')
            A(f'v_or3_b32 v{tmp}, v{r}, v{r+1}, v{r+2}')
            A(f'v_bitop3_b32 v{tmp}, v{tmp}, v{r+3}, v3 bitop3:0xa8')
            A(f'v_cmp_ne_u32 {mk(i)}, 0, v{tmp}')
    def spin(dst, vaddr, offs, tmp, full=False, net=False, sleep=0, mid=None):
        if abl & 2:
            if mid: A('s_waitcnt vmcnt(0)'); mid()
            return
        n = len(offs)
        L = A.newlabel('Lsp'); E = A.newlabel('Lspe'); R = A.newlabel('Lspr')
        for i, o in enumerate(offs): A(f's_mov_b32 s{88+i}, {o & ~0xfff}')
        A(f's_mov_b32 s10, {POLL_LIMIT}')
        def loads():
            for i, o in enumerate(offs): A(f'buffer_load_dwordx4 {v(dst+4*i,4)}, v{vaddr}, s[44:47], s{88+i} offen offset:{o & 0xfff} sc1')
        if mid:
            loads(); mid(); A(f's_branch {R}')
        A.label(L)
        loads()
        A.label(R)
        A('s_sub_u32 s10, s10, 1')
        A(f's_and_b32 s8, s10, {NET-1}')
        X = A.newlabel('Lspx'); Y = A.newlabel('Lspy')
        A(f's_cbranch_scc0 {X}')
        A.label(Y)
        for i in range(n):
            r = dst + 4 * i
            A(f's_waitcnt vmcnt({n-1-i})')
            if full == 2: A(f'v_xor_b32 v{tmp}, s60, v{r+1}\nv_bitop3_b32 v{tmp}, v{tmp}, v{r+3}, s60 bitop3:0xf6')
            elif full: A(f'v_xor_b32 v{tmp}, s60, v{r+3}')
            else:
                for k in range(4):
                    if i == 0 and k == 0: A(f'v_xor_b32 v{tmp}, s56, v{r}')
                    else: A(f'v_bitop3_b32 v{tmp}, v{tmp}, v{r+k}, s{56+k} bitop3:0xf6')
        if not full: A(f'v_and_b32 v{tmp}, 0xff, v{tmp}')
        A(f'v_cmp_ne_u32 vcc, 0, v{tmp}')
        if sleep:
            A(f's_cbranch_vccz {E}\ns_sleep {sleep}\ns_branch {L}')
        else:
            A.raw('    s_cbranch_vccnz ' + L)
        A.label(E)
        cold.append((X, Y, E, net))
    cold = []; slow = []
    def gather(dst, n, vaddr, offs, tmp, full=False, th=0, mid=None, kind=2, sleep=0, net=False, extra=0, retry=None, phase=3):
        if abl & kind:
            if mid: A('s_waitcnt vmcnt(0)'); mid()
            return
        L = A.newlabel('Lpoll'); E = A.newlabel('Lpend')
        if phase & 1:
            for i in range(n): wsload(dst + 4 * i, vaddr, offs[i])
            if mid: mid()
            for i in range(n):
                A(f's_waitcnt vmcnt({n-1-i+extra})'); check(dst + 4 * i, i, tmp, full)
        if not phase & 2: return
        A(f's_mov_b32 s10, {POLL_LIMIT}')
        if phase == 2:
            L0 = A.newlabel('Lp0'); A(f's_branch {L0}')
        A.label(L)
        if n == 1:
            if th: A(f's_bcnt1_i32_b64 s8, {mk(0)}\ns_cmp_le_u32 s8, {th}')
            else: A(f's_cmp_eq_u64 {mk(0)}, 0')
            A(f's_cbranch_scc1 {E}')
        else:
            A(f's_or_b64 s[8:9], {mk(0)}, {mk(1)}')
            for i in range(2, n): A(f's_or_b64 s[8:9], s[8:9], {mk(i)}')
            A(f's_cbranch_scc0 {E}')
        A('s_sub_u32 s10, s10, 1')
        A(f's_cbranch_scc1 {E}')
        if retry: retry()
        if sleep: A(f's_sleep {sleep}')
        if net:
            Nn = A.newlabel('Lnet')
            A(f's_and_b32 s8, s10, {NET-1}\ns_cbranch_scc1 {Nn}')
            A('s_mov_b64 exec, -1\nbuffer_wbl2 sc1\ns_waitcnt vmcnt(0)\nbuffer_inv sc1\ns_waitcnt vmcnt(0)')
            A.label(Nn)
        if phase == 2: A.label(L0)
        for i in range(n):
            A(f's_mov_b64 exec, {mk(i)}')
            if n > 1:
                S = A.newlabel('Lsk'); A(f's_cbranch_execz {S}')
            wsload(dst + 4 * i, vaddr, offs[i])
            if n > 1: A.label(S)
        if phase == 2 and mid: mid()
        A('s_waitcnt vmcnt(0)')
        for i in range(n):
            if n > 1:
                S = A.newlabel('Lsk'); A(f's_mov_b64 exec, {mk(i)}'); A(f's_cbranch_execz {S}')
            check(dst + 4 * i, i, tmp, full)
            if n > 1: A.label(S)
        A(f's_branch {L}')
        A.label(E)
        A('s_mov_b64 exec, -1')
    def lds_spin(off, val, vt, sleep=1):
        L = A.newlabel('Lspin'); E = A.newlabel('Lspe')
        A(f's_mov_b32 s10, {POLL_LIMIT*20}\nv_mov_b32 v{vt+1}, 0')
        A.label(L)
        A(f'ds_read_b32 v{vt}, v{vt+1} offset:{off}')
        A('s_waitcnt lgkmcnt(0)')
        A(f'v_readfirstlane_b32 s11, v{vt}')
        A(f's_cmp_ge_u32 s11, {val}')
        A(f's_cbranch_scc1 {E}')
        if sleep: A(f's_sleep {sleep}')
        A('s_sub_u32 s10, s10, 1')
        A(f's_cbranch_scc0 {L}')
        A.label(E)
    def lds_inc(off, vt, rtn=False):
        A(f'v_mov_b32 v{vt}, 0\nv_mov_b32 v{vt+1}, 1')
        A('s_waitcnt lgkmcnt(0)')
        A('s_mov_b64 exec, 1')
        if rtn: A(f'ds_add_rtn_u32 v{vt+1}, v{vt}, v{vt+1} offset:{off}')
        else: A(f'ds_add_u32 v{vt}, v{vt+1} offset:{off}')
        A('s_mov_b64 exec, -1')
        if rtn:
            A('s_waitcnt lgkmcnt(0)')
            A(f'v_readfirstlane_b32 s4, v{vt+1}')
    def tile_loads(dst, vaddr, srd, stride, row0=0, rng=range(8)):
        for i in rng:
            o = (row0 + i) * stride
            if o: A(f's_mov_b32 s11, {o}')
            A(f'buffer_load_dwordx4 {v(dst+4*i,4)}, v{vaddr}, {srd}, {"s11" if o else "0"} offen nt')
    def perm_pair(f0, f1, raw, t):
        for b in range(4):
            X = raw + 8 * b + t; Y = X + 4
            A(f'v_perm_b32 v{f0+b}, v{Y}, v{X}, s12')
            A(f'v_perm_b32 v{f1+b}, v{Y}, v{X}, s13')
    def perm_all(dst, raw):
        for t in range(4): perm_pair(dst + 8 * t, dst + 8 * t + 4, raw, t)
    def mfma(acc, a, b, first):
        A(f'v_mfma_f32_16x16x32_bf16 {v(acc,4)}, {v(a,4)}, {v(b,4)}, {"0" if first else v(acc,4)}')
    def select_out(dst, acc):
        for k in range(4): A(f'v_cndmask_b32 v{dst+k}, v{acc+4*k}, v{acc+16+4*k}, s[14:15]')
    stid = [0]
    def wsstore(r, vaddr, soff='0', fl='sc1'):
        stid[0] += 1
        if abl & 32 or (nost >> (stid[0] - 1)) & 1: return
        A(f'buffer_store_dwordx4 {v(r,4)}, v{vaddr}, s[44:47], {soff} offen {fl}')
    def locstore(r, vaddr, soff='0'):
        if not loc: return wsstore(r, vaddr, soff)
        L1 = A.newlabel('Lst'); L2 = A.newlabel('Lst')
        A(f's_cmp_lg_u32 s67, 0\ns_cbranch_scc1 {L1}')
        wsstore(r, vaddr, soff, '')
        A.label(L2)
        slow.append((L1, L2, r, vaddr, soff))
    def tags():
        A('s_add_u32 s60, s60, 0x01010101')
        A('s_and_b32 s56, s60, 0xff\ns_bfe_u32 s57, s60, 0x80008\ns_bfe_u32 s58, s60, 0x80010\ns_lshr_b32 s59, s60, 24')
    def srd(n, base, size):
        A(f's_mov_b32 s{n}, s{base}\ns_mov_b32 s{n+1}, s{base+1}\ns_mov_b32 s{n+2}, {size}\ns_mov_b32 s{n+3}, 0x20000')
    G_ = ('s2', 0, 3); C_ = ('s2', 3, 5); CW = ('s3', 0, 2)
    T_ = lambda f, m: f + (m,)

    A('s_cmp_ge_u32 s2, 256\ns_cbranch_scc1 L_end')
    A('s_load_dwordx16 s[16:31], s[0:1], 0')
    A('s_load_dwordx8 s[32:39], s[0:1], 64')
    A('s_load_dwordx2 s[40:41], s[0:1], 96')
    A('s_load_dwordx2 s[42:43], s[0:1], 112')
    if stamps or hold: A('s_memrealtime s[70:71]')
    A('v_lshrrev_b32 v1, 6, v0')
    A('v_and_b32 v0, 63, v0')
    A('v_readfirstlane_b32 s3, v1')
    A('s_mov_b32 s12, 0x05040100\ns_mov_b32 s13, 0x07060302')
    A('s_cmp_lt_u32 s3, 4')
    A('s_cbranch_scc1 L_ctrl')

    KB = 40; QF = 4; CT = 12; S = 20; T = 36; OA = 136
    USTEP = (1 << 20) if GRP else 32768
    A('s_setprio 1')
    if cpf0:
        A('s_cmp_lg_u32 s3, 4\ns_cbranch_scc1 L_cp0')
        A('s_getpc_b64 s[8:9]')
        A.label('L_pc0')
        A(f's_lshr_b32 s4, s2, 3\ns_lshl_b32 s4, s4, 10\ns_min_u32 s4, s4, L_codeend-L_pc0-1024\nv_lshlrev_b32 v4, 4, v0\nv_add_u32 v4, s4, v4')
        A('global_load_dwordx4 v[32:35], v4, s[8:9]')
        A.label('L_cp0')
    addr(1, [(1, 1, 1024), (2, 2, 256), (4, 2, 32), (0, 1, 16)], tmp=4)
    A('v_lshlrev_b32 v2, 4, v0')
    addr(39, [(1, 3, 256), (4, 2, 32), (0, 1, 16)], tmp=4)
    A('s_sub_u32 s6, s3, 4')
    sexpr('s4', [T_(G_, 1 << 23), T_(C_, 32768 if GRP else 262144), ('s6', 0, 3, 4096)])
    A(f's_lshr_b32 s61, s2, 3\ns_mul_i32 s61, s61, {ROT*USTEP}\ns_and_b32 s61, s61, {8*USTEP-1}')
    A(f's_sub_u32 s5, {64<<20}, s4')
    A('s_mov_b32 s14, 0xaaaaaaaa\ns_mov_b32 s15, 0xaaaaaaaa')
    A('v_mov_b32 v3, 0xffff\nv_mov_b32 v9, 0xffff0000\nv_cndmask_b32 v3, v3, v9, s[14:15]')
    A('s_waitcnt lgkmcnt(0)')
    if stamps: A(f's_mov_b32 s{SB}, s70')
    A('s_add_u32 s48, s18, s4\ns_addc_u32 s49, s19, 0\ns_mov_b32 s50, s5\ns_mov_b32 s51, 0x20000')
    A('s_add_u32 s52, s20, s4\ns_addc_u32 s53, s21, 0\ns_mov_b32 s54, s5\ns_mov_b32 s55, 0x20000')
    issued = [0]; nv = [0]
    def wait_load(k): A(f's_waitcnt vmcnt({max(issued[0] - 1 - k, 0)})')
    def unit(n):
        if n % 4 == 0:
            A('s_mov_b32 s7, s61' if n == 0 else f's_add_u32 s7, s7, {USTEP}\ns_and_b32 s7, s7, {8*USTEP-1}')
    def kload(n):
        d = DA if (DA and NA0 <= n < NA1) else D1
        if ALT and n % ALT == ALT - 1: d -= 1
        if issued[0] >= d and n >= K0: A(f's_waitcnt vmcnt({d-1})')
        unit(n); j = n % 4
        A(f'buffer_load_dwordx4 {v(KB+4*n,4)}, v1, s[48:51], s7 offen offset:{(j>>1)*2048+(j&1)*128} nt')
        issued[0] += 1
        if n == PR: A('s_cmp_lt_u32 s6, 4\ns_cbranch_scc1 L_pr\ns_setprio 2'); A.label('L_pr')
        if n == TH_: lds_inc(C_T1, T)
        if n == TQ: lds_inc(C_T2, T)
    def vslot(n): return KB + 4 * (n % 24)
    dq = [0]
    def dcur(): return dq[0] or (D3 if nv[0] >= N3 else D2)
    def vload():
        n = nv[0]
        A(f's_waitcnt vmcnt({dcur()-1-(1 if ALT and n % ALT == ALT - 1 and n < N3 else 0)})')
        unit(n)
        if n < NL:
            if n % 4 == 0: A(f's_add_u32 m0, s62, {n*1024}')
            A(f'buffer_load_dwordx4 v2, s[52:55], s7 offen offset:{(n%4)*1024} nt lds')
        else:
            A(f'buffer_load_dwordx4 {v(vslot(n),4)}, v2, s[52:55], s7 offen offset:{(n%4)*1024} nt')
        issued[0] += 1; nv[0] += 1
        if n + 32 == PR: A('s_cmp_lt_u32 s6, 4\ns_cbranch_scc1 L_pr\ns_setprio 2'); A.label('L_pr')
        if n + 32 == TQ: lds_inc(C_T2, T)
        if n == WOAT: lds_inc(C_WO, T)
        if n == STAT: lds_inc(C_V, T)
        if n == PREAT: lds_inc(C_XS, T)
    if tlb:
        A('s_cmp_lg_u32 s3, 5\ns_cbranch_scc1 L_tl0')
        A('s_mov_b64 exec, 1\nv_mov_b32 v4, 0')
        A('buffer_load_dword v32, v4, s[52:55], 0 offen nt')
        A('global_load_dword v33, v4, s[40:41]')
        A(f'v_mov_b32 v5, {0x100000}\nglobal_load_dword v34, v5, s[42:43]\nv_mov_b32 v6, {0x220000}\nglobal_load_dword v35, v6, s[42:43]')
        sexpr('s4', [T_(G_, 4 * 128 * 2048), ('s2', 3, 2, 128 * 2048)])
        A('v_mov_b32 v7, s4\nglobal_load_dword v31, v7, s[24:25] nt')
        sexpr('s4', [('s2', 4, 3, 128 * 12288)])
        A('v_mov_b32 v8, s4\nglobal_load_dword v30, v8, s[38:39] nt')
        A(f'v_add_u32 v8, {127*12288}, v8\nglobal_load_dword v29, v8, s[38:39] nt')
        A('global_load_ushort v28, v4, s[34:35]')
        A('s_mov_b64 exec, -1')
        A.label('L_tl0')
    stamp(5)
    for n in range(K0): kload(n)
    A('s_barrier')
    stamp(6)
    A(f's_mul_i32 s62, s6, {NL*1024}\ns_add_u32 s62, s62, {LV}')
    for n in range(K0, 32):
        kload(n)
        if n == D1: stamp(7)
    for n in range(NL): vload()
    stamp(1)
    lds_spin(C_Q, 4, 4)
    stamp(2)
    A(f'ds_read_b128 {v(QF,4)}, v39 offset:{LQ}')
    A(f'ds_read_b128 {v(QF+4,4)}, v39 offset:{LQ+128}')
    A('s_waitcnt lgkmcnt(0)')
    def qk_fin(b, par):
        c = CT + 4 * par
        A(f'v_cndmask_b32 v{T}, v{c+2}, v{c+1}, s[14:15]')
        A(f'v_cndmask_b32 v{S+b}, v{c}, v{c+3}, s[14:15]')
        A(f'v_add_f32_dpp v{S+b}, v{T}, v{S+b} {X1_} {MK}')
    assert NL >= max(D1, D2)
    order = [(b + NL // 2) % 16 for b in range(16)] if QO else list(range(16))
    if DQ: dq[0] = DQ
    for i, b in enumerate(order):
        c = CT + 4 * (i & 1)
        mfma(c, KB + 8 * b, QF, True)
        mfma(c, KB + 8 * b + 4, QF + 4, False)
        if i >= 1: qk_fin(order[i - 1], (i - 1) & 1)
        if QO:
            if i in ((0, 1, 2, 8, 15) if QO == 1 else (0, 1, 2, 3, 9, 15)): vload()
        elif b - NL // 2 in (0, 1, 2) or b == 13: vload()
    qk_fin(order[15], 1)
    A(f's_mov_b32 s4, {hx(f2u(128 ** -0.5 * (1 if norsc < 2 else 1 - 0.02 * norsc)))}')
    for i in range(0, 16, 2):
        if not norsc: rnd2(S + i, S + i + 1, T + (i // 2) % 2)
        A(f'v_mul_f32 v{S+i}, s4, v{S+i}\nv_mul_f32 v{S+i+1}, s4, v{S+i+1}')
        if not norsc: rnd2(S + i, S + i + 1, T + 2 + (i // 2) % 2)
    M = 12; Lr = 13
    A(f'v_max3_f32 v{M}, v{S}, v{S+1}, v{S+2}')
    for i in range(3, 15, 2): A(f'v_max3_f32 v{M}, v{M}, v{S+i}, v{S+i+1}')
    A(f'v_max_f32 v{M}, v{M}, v{S+15}')
    red('v_max_f32', [M], [X1_, 'p16', 'p32'], [T])
    vload()
    A(f's_mov_b32 s4, {hx(f2u(LOG2E))}')
    for i in range(16): A(f'v_sub_f32 v{S+i}, v{S+i}, v{M}')
    for i in range(16): A(f'v_mul_f32 v{S+i}, s4, v{S+i}')
    for i in range(16): A(f'v_exp_f32 v{S+i}, v{S+i}')
    A(f'v_add_f32 v{Lr}, v{S}, v{S+1}')
    for i in range(2, 16): A(f'v_add_f32 v{Lr}, v{Lr}, v{S+i}')
    if QO: vload()
    for i in range(16): A(f'v_cvt_pk_bf16_f32 v{S+i}, v{S+i}, v{S+i}')
    for i in range(16): A(f'v_and_b32 v{S+i}, v3, v{S+i}')
    red('v_add_f32', [Lr], [X1_, 'p16', 'p32'], [T])
    addr(14, [(0, 6, 4)], [('s6', 0, 3, 64)])
    A('s_mov_b64 exec, 0x5555')
    A(f'ds_write_b64 v14, v[{M}:{Lr}] offset:{LST}')
    A('s_mov_b64 exec, -1')
    vload()
    lds_inc(C_ST, T)
    dq[0] = 0
    stamp(3)
    PT = 4
    if NL:
        wait_load(32 + NL - 1)
        A('v_add_u32 v4, s62, v2')
        for n in range(NL): A(f'ds_read_b128 {v(vslot(n),4)}, v4 offset:{n*1024}')
        A('s_waitcnt lgkmcnt(0)')
    for tau in range(4):
        raw = vslot(8 * tau)
        if tau < 3:
            lim = min(32, 8 * tau + 24)
            while nv[0] < lim and (issued[0] - 1 - (32 + 8 * tau + 7)) < dcur(): vload()
            wait_load(32 + 8 * tau + 7)
            for t in range(4):
                f0 = PT + 8 * (t & 1); f1 = f0 + 4
                perm_pair(f0, f1, raw, t)
                mfma(OA + 8 * t, S + 4 * tau, f0, tau == 0)
                mfma(OA + 8 * t + 4, S + 4 * tau, f1, tau == 0)
        else:
            while nv[0] < 32: vload()
            addr(4, [(4, 2, 1024), (0, 4, 16)], [('s6', 0, 3, NL * 1024)], LV, tmp=5)
            A('v_xor_b32 v5, 128, v4')
            FB = vslot(8)
            for b in range(4):
                wait_load(32 + 24 + 2 * b + 1)
                for t in range(4):
                    X = raw + 8 * b + t; Y = X + 4
                    A(f'v_perm_b32 v{FB+8*t+b}, v{Y}, v{X}, s12')
                    A(f'v_perm_b32 v{FB+8*t+4+b}, v{Y}, v{X}, s13')
                    if b == 3 and t >= 1:
                        for n in (2 * t - 2, 2 * t - 1): mfma(OA + 4 * n, S + 12, FB + 4 * n, False)
            for n in (6, 7): mfma(OA + 4 * n, S + 12, FB + 4 * n, False)
    W = 40
    for hq in range(2):
        for n in range(4 * hq, 4 * hq + 4):
            A(f'v_add_f32 v{W+n}, v{OA+4*n}, v{OA+4*n+1}')
            A(f'v_add_f32 v{W+8+n}, v{OA+4*n+2}, v{OA+4*n+3}')
        A(f'ds_write_b128 v{4+hq}, {v(W+4*hq,4)} offset:{256*hq}')
        A(f'ds_write_b128 v{4+hq}, {v(W+8+4*hq,4)} offset:{512+256*hq}')
    A('s_waitcnt lgkmcnt(0)')
    stamp(4)
    A('s_barrier')
    if PLD == 0:
        A('s_and_b32 s4, s2, 7\ns_cmp_ge_u32 s4, 2\ns_cbranch_scc1 L_s9')
        A('s_cmp_ge_u32 s6, 3\ns_cbranch_scc1 L_s9')
        A('s_load_dword s60, s[42:43], 0')
        srd(44, 42, WS_USED)
        A(f'v_mov_b32 v3, 0xff\ns_mul_i32 s4, s6, 7168\ns_min_u32 s4, s4, {NB*1024-7168}\nv_add_u32 v4, s4, v2\nv_add_u32 v6, {TB}, v4')
        A('s_waitcnt lgkmcnt(0)')
        tags()
        gather(104, 7, 6, [1024 * i for i in range(7)], 5)
        for i in range(7): A(f'ds_write_b128 v4, {v(104+4*i,4)} offset:{LT+1024*i}')
        lds_inc(C_PL, 8)
    A.label('L_s9')
    stamp_flush(8)
    A('s_endpgm')

    A.label('L_ctrl')
    A('s_setprio 3')
    A('v_mov_b32 v3, 0xff')
    HI = (4, 2); LOf = (0, 4)
    CF = 4; PTc = 24; GR = 104; BF = 136; AC2 = 104
    def silu(src, n, dst, tmp):
        A(f's_mov_b32 s4, {hx(f2u(-LOG2E))}')
        m = 2 * n
        for r in range(n): A(f'v_lshlrev_b32 v{tmp+m+2*r}, 16, v{src+r}\nv_and_b32 v{tmp+m+2*r+1}, 0xffff0000, v{src+r}')
        for r in range(m): A(f'v_mul_f32 v{tmp+r}, s4, v{tmp+m+r}')
        for r in range(m): A(f'v_exp_f32 v{tmp+r}, v{tmp+r}')
        for r in range(m): A(f'v_add_f32 v{tmp+r}, 1.0, v{tmp+r}')
        for r in range(m): A(f'v_rcp_f32 v{tmp+r}, v{tmp+r}')
        for r in range(m): A(f'v_mul_f32 v{tmp+r}, v{tmp+r}, v{tmp+m+r}')
        for r in range(n): A(f'v_cvt_pk_bf16_f32 v{dst+r}, v{tmp+2*r}, v{tmp+2*r+1}')
    def tile_mfma(raw, a, AC, first):
        for t in range(4):
            f0 = PTc + 8 * (t & 1); f1 = f0 + 4
            perm_pair(f0, f1, raw, t)
            mfma(AC + 8 * t, a, f0, first)
            mfma(AC + 8 * t + 4, a, f1, first)
    def sigma(a):
        rnd2(a, a + 1, a + 2)
        A(f'v_add_f32 v{a+1}, {hx(f2u(1e-5))}, v{a+1}')
        rnd1(a + 1)
        A(f'v_sqrt_f32 v{a+1}, v{a+1}')
        rnd1(a + 1)
        A(f'v_rcp_f32 v{a+1}, v{a+1}')
    def sumn(dst, n, src=GR):
        for k in range(4): A(f'v_add_f32 v{dst+k}, v{src+k}, v{src+4+k}')
        for i in range(2, n):
            for k in range(4): A(f'v_add_f32 v{dst+k}, v{dst+k}, v{src+4*i+k}')
    def afrag(lo2):
        for k in range(4): A(f'v_mov_b32_dpp v{4+k}, v{lo2+(k&1)} quad_perm:{"[0,0,2,2]" if k < 2 else "[1,1,3,3]"} {MK}')
    def red4_publish(vaddr, lr, rnd=True, fl='sc1'):
        for i in range(4): A(f'ds_read_b128 {v(GR+4*i,4)}, v18 offset:{lr+1024*i}')
        A('s_waitcnt lgkmcnt(0)')
        for k in range(4): A(f'v_add_f32 v{4+k}, v{GR+k}, v{GR+4+k}\nv_add_f32 v{8+k}, v{GR+8+k}, v{GR+12+k}')
        for k in range(4): A(f'v_add_f32 v{4+k}, v{4+k}, v{8+k}')
        embed(8, [4, 5, 6, 7], rnd)
        wsstore(8, vaddr, fl=fl)
    TW = 40; TR = 72; TC = 96; TA = 102; TU = 104; TE = 118
    def tab_load(sidx):
        A(f's_mul_i32 s4, {sidx}, 1792\nv_mul_u32_u24 v4, 28, v0\nv_add_u32 v4, s4, v4')
        if notab & 2: A('v_mov_b32 v4, 0')
        for a_, sp in enumerate(('s[28:29]', 's[30:31]', 's[32:33]')):
            A(f'global_load_dwordx4 {v(TR+8*a_,4)}, v4, {sp}')
            A(f'global_load_dwordx3 {v(TR+8*a_+4,3)}, v4, {sp} offset:16')
    def tab_unpack():
        A('s_waitcnt vmcnt(0)')
        for a in range(3):
            for i in range(7):
                d = TW + 14 * a + 2 * i
                A(f'v_lshlrev_b32 v{d}, 16, v{TR+8*a+i}\nv_and_b32 v{d+1}, 0xffff0000, v{TR+8*a+i}')
        for i in range(7):
            A(f'v_pk_mul_f32 {v(TW+42+2*i,2)}, {v(TW+14+2*i,2)}, {v(TW+28+2*i,2)}')
            A(f'v_pk_mul_f32 {v(TW+28+2*i,2)}, {v(TW+2*i,2)}, {v(TW+28+2*i,2)}')
    ca = -2.0 * 0.7978845608028654 * LOG2E
    def tab_consts():
        A(f'v_mov_b32 v{TC}, {hx(f2u(ca))}\nv_mov_b32 v{TC+1}, {hx(f2u(ca))}')
        A(f'v_mov_b32 v{TC+2}, {hx(f2u(ca*0.044715))}\nv_mov_b32 v{TC+3}, {hx(f2u(ca*0.044715))}')
        A(f'v_mov_b32 v{TC+4}, 1.0\nv_mov_b32 v{TC+5}, 1.0')
    def tab_eval():
        P = lambda r: v(r, 2)
        for i in range(7): A(f'v_pk_fma_f32 {P(TU+2*i)}, {P(TW+2*i)}, s[64:65], {P(TW+14+2*i)}')
        for i in range(7): A(f'v_pk_mul_f32 {P(TE+2*i)}, {P(TU+2*i)}, {P(TU+2*i)}')
        for i in range(7): A(f'v_pk_fma_f32 {P(TE+2*i)}, {P(TE+2*i)}, {P(TC+2)}, {P(TC)}')
        for i in range(7): A(f'v_pk_mul_f32 {P(TE+2*i)}, {P(TE+2*i)}, {P(TU+2*i)}')
        for i in range(14): A(f'v_exp_f32 v{TE+i}, v{TE+i}')
        for i in range(7): A(f'v_pk_fma_f32 {P(TU+2*i)}, {P(TW+28+2*i)}, s[64:65], {P(TW+42+2*i)}')
        for i in range(7): A(f'v_pk_add_f32 {P(TE+2*i)}, {P(TE+2*i)}, {P(TC+4)}')
        for i in range(14): A(f'v_rcp_f32 v{TE+i}, v{TE+i}')
        A(f'v_pk_mul_f32 {P(TA)}, {P(TU)}, {P(TE)}')
        for i in range(1, 7): A(f'v_pk_fma_f32 {P(TA)}, {P(TU+2*i)}, {P(TE+2*i)}, {P(TA)}')
        A(f'v_add_f32 v{TA}, v{TA}, v{TA+1}')
    def tab_to(n, n0=None):
        if n0 is None: A(f's_mov_b32 s5, {n}')
        else: A(f's_cmp_eq_u32 s3, 0\ns_cselect_b32 s5, {n0}, {n}')
        A('s_call_b64 s[68:69], L_tab')
    def pack_afrag(r):
        A(f'v_perm_b32 v12, v{r+1}, v{r}, s13\nv_perm_b32 v13, v{r+3}, v{r+2}, s13')
        afrag(12)
    def embed_bf(dst, srcs):
        for k, s_ in enumerate(srcs): A(f'v_or_b32 v{dst+k}, s{56+k}, v{s_}')
    CG = ('s2', 0, 4); RG = ('s2', 4, 4)
    addr(12, [HI + (8 * 12288,), LOf + (16,)], [T_(RG, 64 * 12288), T_(CG, 256)], tmp=15)
    addr(13, [(2, 1, 2048), HI + (16,)], [T_(RG, 128)], tmp=15)
    A(f'v_mov_b32 v14, 0\nv_lshlrev_b32 v15, 2, v0\ns_mov_b64 exec, 0xffff\nds_write_b32 v15, v14 offset:{LCNT}\ns_mov_b64 exec, -1')
    addr(14, [HI + (8 * 8192,), LOf + (16,)], [('s2', 5, 3, 128 * 8192), T_(CW, 32 * 8192), T_(G_, 1024), ('s2', 3, 2, 256)], tmp=16)
    RG8 = ('s2', 4, 3); CT_ = ('s2', 7, 1)
    addr(17, [HI + (8 * 12288,), LOf + (16,)], [T_(RG8, 128 * 12288), T_(CW, 32 * 12288), T_(CT_, 4096), T_(CG, 256)], 4096, tmp=16)
    A('v_lshlrev_b32 v18, 4, v0')
    A('s_cmp_lt_u32 s2, 64\ns_cselect_b32 s67, s3, 0')
    A('s_waitcnt lgkmcnt(0)')
    if stamps: A(f's_mov_b32 s{SB}, s70')
    srd(48, 38, 12 << 20)
    A('s_cmp_lg_u32 s3, 0\ns_cbranch_scc1 L_c0')
    A(f'global_load_dwordx4 {v(CF,4)}, v13, s[36:37]')
    A(f'global_load_dwordx4 {v(CF+4,4)}, v13, s[36:37] offset:64')
    tile_loads(40, 12, 's[48:51]', 12288, 0)
    tile_loads(136, 12, 's[48:51]', 12288, 32)
    A.label('L_c0')
    XR = 40
    RB = ('s2', 3, 1); RD = ('s2', 4, 2)
    A('s_cmp_lg_u32 s67, 1\ns_cbranch_scc1 L_c1')
    addr(15, [(0, 6, 16)], [T_(RB, 2048)])
    for i in range(2): A(f'global_load_dwordx4 {v(XR+4*i,4)}, v15, s[16:17] offset:{1024*i}')
    addr(15, [(0, 3, 8)], [T_(RB, 2048), T_(G_, 256), T_(RD, 64)], tmp=16)
    A(f'global_load_dwordx2 {v(XR+8,2)}, v15, s[16:17]')
    A.label('L_c1')
    if B0p == 0: A('s_barrier')
    A('s_load_dword s60, s[42:43], 0')
    srd(52, 22, 8 << 20)
    tile_loads(GR, 17, 's[48:51]', 12288)
    if B0p == 1: A('s_barrier')
    A('s_cmp_eq_u32 s3, 0\ns_cbranch_scc1 L_c1b')
    tile_loads(BF, 14, 's[52:55]', 8192)
    A.label('L_c1b')
    if B0p == 2: A('s_barrier')
    A('s_mov_b32 s14, 0\ns_mov_b32 s15, -1')
    srd(44, 42, WS_USED)
    addr(16, [(4, 1, 512), LOf + (32,), (5, 1, 16)], [T_(CW, 1024)], tmp=15)
    A('s_lshl_b32 s4, s3, 10\nv_add_u32 v19, s4, v18')
    A(f's_and_b32 s4, s2, 127\ns_mul_i32 s4, s4, {NB}\ns_add_u32 s4, s4, {E0*128}\ns_lshl_b32 s4, s4, 16\ns_lshr_b32 s5, s2, 7\ns_lshl_b32 s5, s5, 31\ns_or_b32 s64, s4, s5')
    A('s_lshl_b32 s6, s3, 4\ns_mov_b32 s66, 0')
    A('s_waitcnt lgkmcnt(0)')
    tags()
    A('s_cmp_lg_u32 s3, 0\ns_cbranch_scc1 L_c2')
    A('s_waitcnt vmcnt(24)')
    silu(CF, 8, CF, 72)
    sexpr('s4', [T_(CG, 16 * SL), T_(RG, SL)], MODP)
    A('v_add_u32 v12, s4, v18')
    A('s_waitcnt vmcnt(16)')
    tile_mfma(40, CF, 72, True)
    A('s_waitcnt vmcnt(8)')
    tile_mfma(136, CF + 4, 72, False)
    select_out(PTc, 72)
    embed(PTc + 4, range(PTc, PTc + 4))
    wsstore(PTc + 4, 12, fl=LOC)
    tile_loads(BF, 14, 's[52:55]', 8192)
    A.label('L_c2')
    stamp(1)
    addr(13, [(2, 1, 2048), HI + (16,)], [T_(RG8, 256), T_(CW, 64)], tmp=15)
    A('global_load_dwordx4 v[96:99], v13, s[36:37]')
    tab_load('s3')
    A('s_cmp_lg_u32 s67, 1\ns_cbranch_scc1 L_c2b')
    A('s_waitcnt vmcnt(23)')
    XU = 52; LN = 20
    for r in range(8): A(f'v_lshlrev_b32 v{XU+2*r}, 16, v{XR+r}\nv_and_b32 v{XU+2*r+1}, 0xffff0000, v{XR+r}')
    st6 = [X1_, X2_, HM, RM, 'p16', 'p32']
    A(f'v_add_f32 v4, v{XU}, v{XU+1}')
    for i in range(2, 16): A(f'v_add_f32 v4, v4, v{XU+i}')
    red('v_add_f32', [4], st6, [6])
    A(f'v_mul_f32 v4, {hx(f2u(1.0/1024))}, v4')
    A(f'v_sub_f32 v6, v{XU}, v4\nv_mul_f32 v5, v6, v6')
    for i in range(1, 16): A(f'v_sub_f32 v{6+(i&1)}, v{XU+i}, v4\nv_fmac_f32 v5, v{6+(i&1)}, v{6+(i&1)}')
    red('v_add_f32', [5], st6, [6])
    A(f'v_mul_f32 v5, {hx(f2u(1.0/1024))}, v5')
    sigma(4)
    A(f'v_lshlrev_b32 v20, 16, v{XR+8}\nv_and_b32 v21, 0xffff0000, v{XR+8}\nv_lshlrev_b32 v22, 16, v{XR+9}\nv_and_b32 v23, 0xffff0000, v{XR+9}')
    for k in range(4): A(f'v_sub_f32 v{LN+k}, v{LN+k}, v4')
    rnd2(LN, LN + 1, 6); rnd2(LN + 2, LN + 3, 7)
    for k in range(4): A(f'v_mul_f32 v{LN+k}, v{LN+k}, v5')
    rnd2(LN, LN + 1, 6); rnd2(LN + 2, LN + 3, 7)
    A.label('L_c2b')
    A('s_waitcnt vmcnt(6)')
    silu(96, 4, CF, 40)
    tile_mfma(GR, CF, 40, True)
    select_out(8, 40)
    A(f'ds_write_b128 v16, v[8:11] offset:{LRED2}')
    tab_unpack(); tab_consts()
    A('s_cmp_lg_u32 s67, 1\ns_cbranch_scc1 L_c2d')
    addr(4, [(5, 1, 128 * SL), (3, 2, SL), (0, 1, 512), (1, 2, 16)], [T_(G_, 16 * SL), T_(RB, 256), T_(RD, 64)], MODP, tmp=5)
    if r1st == 1: stamp(7)
    gather(GR, 4, 4, [4 * SL * i for i in range(4)], 5, kind=1, net=True)
    if r1st == 1: stamp(8)
    sumn(4, 4)
    red('v_add_f32', [4, 5, 6, 7], [R8, 'p16'], [8, 9, 10, 11])
    rnd2(4, 5, 8); rnd2(6, 7, 9)
    for k in range(4): A(f'v_mov_b32 v{8+k}, v{4+k}')
    for k in range(4): A(f'v_permlane32_swap_b32 v{4+k}, v{8+k}')
    for k in range(4): A(f'v_add_f32 v{8+k}, 1.0, v{8+k}')
    rnd2(8, 9, 13); rnd2(10, 11, 14)
    for k in range(4): A(f'v_mul_f32 v{8+k}, v{8+k}, v{LN+k}')
    rnd2(8, 9, 13); rnd2(10, 11, 14)
    for k in range(4): A(f'v_add_f32 v{8+k}, v{4+k}, v{8+k}')
    rnd2(8, 9, 13); rnd2(10, 11, 14)
    embed_bf(8, [8, 9, 10, 11])
    addr(4, [(0, 6, 16)], [T_(G_, 1024), T_(RB, 512), T_(RD, 128)], HR)
    A('s_mov_b64 exec, 0xff')
    wsstore(8, 4)
    A('s_mov_b64 exec, -1')
    A('s_branch L_c2c')
    A.label('L_c2d')
    tab_to(N1, N10)
    A.label('L_c2c')
    addr(4, [(2, 1, 512), HI + (32,), (0, 1, 16)], [('s2', 5, 3, 1024), T_(CW, 128)], HR, tmp=5)
    if TH_ < 99: lds_spin(C_T1, TGC, 6, sleep=2)
    stamp(2)
    gather(GR, 1, 4, [0], 5, kind=1, net=True)
    stamp(3)
    pack_afrag(GR)
    tile_mfma(BF, 4, AC2, True)
    sexpr('s4', [('s2', 0, 8, SL)], QP)
    A('v_add_u32 v14, s4, v18')
    select_out(8, AC2)
    A(f'ds_write_b128 v16, v[8:11] offset:{LRED}')
    lds_inc(C_P2, 12, rtn=True)
    A('s_cmp_lg_u32 s4, 3\ns_cbranch_scc1 L_c3')
    red4_publish(14, LRED, fl=LOC)
    A.label('L_c3')
    stamp(4)
    tab_to(N2)
    def line_reduce_store(vgaddr, offs, base, fl, GR=GR, **kw):
        n = len(offs)
        gather(GR, n, vgaddr, offs, 5, **kw)
        if n > 1 and r1st == 3:
            stamp(7)
            A(f's_sub_u32 s4, {POLL_LIMIT}, s10\ns_mul_i32 s4, s4, 100\ns_add_u32 s{SB+8}, s{SB+9}, s4')
        if n > 1: sumn(GR, n, GR)
        red('v_add_f32', [GR, GR + 1, GR + 2, GR + 3], [R8, 'p16', 'p32'], [8, 9, 10, 11])
        rnd2(GR, GR + 1, 8); rnd2(GR + 2, GR + 3, 9)
        embed_bf(8, [GR, GR + 1, GR + 2, GR + 3])
        A(f's_mov_b32 s7, {base}\ns_mov_b64 exec, 0xff')
        wsstore(8, 17, 's7', fl)
        A('s_mov_b64 exec, -1')
    addr(17, [(0, 6, 16)], [('s2', 7, 1, 16384), T_(G_, 2048), ('s2', 3, 4, 128)])
    A('s_cmp_lg_u32 s3, 2\ns_cbranch_scc1 L_r2')
    addr(4, [(3, 3, 32 * SL), (0, 3, 16)], [T_(G_, SL), ('s2', 5, 2, 8 * SL), ('s2', 7, 1, 512), ('s2', 3, 2, 128)], QP, tmp=5)
    line_reduce_store(4, [0], Q2, 'sc1', kind=1, net=True)
    A.label('L_r2')
    tab_to(NB)
    if TQ < 99: lds_spin(C_T2, TGC, 6, sleep=2)
    sexpr('s4', [T_(G_, 4096)], Q2)
    A('v_add_u32 v4, s4, v19')
    stamp(5)
    gather(GR, 1, 4, [0], 5, kind=1, net=True)
    A(f'v_perm_b32 v4, v{GR+1}, v{GR}, s13\nv_perm_b32 v5, v{GR+3}, v{GR+2}, s13')
    A('v_lshrrev_b32 v6, 1, v19')
    A(f'ds_write_b64 v6, v[4:5] offset:{LQ}')
    lds_inc(C_Q, 8)
    stamp(6)
    lds_inc(C_TB, 4, rtn=True)
    A('s_cmp_lg_u32 s4, 3\ns_cbranch_scc1 L_c3d')
    A(f's_mov_b64 exec, {(1 << (NB//4)) - 1}')
    A('v_lshlrev_b32 v4, 8, v0')
    for i in range(16): A(f'ds_read_b128 {v(40+4*i,4)}, v4 offset:{LTP+16*i}')
    A(f's_mul_i32 s4, s2, {NB*4}\ns_add_u32 s4, s4, {TB}\nv_add_u32 v12, s4, v18')
    A('s_waitcnt lgkmcnt(0)')
    for k in range(4):
        A(f'v_add_f32 v{4+k}, v{40+16*k}, v{41+16*k}')
        for i in range(2, 16): A(f'v_add_f32 v{4+k}, v{4+k}, v{40+16*k+i}')
    embed(8, [4, 5, 6, 7])
    wsstore(8, 12)
    A('s_mov_b64 exec, -1')
    A.label('L_c3d')
    if not r1st: stamp(7)
    W2R = 40; BF = 72; AC2 = 40
    if cpf:
        A('s_cmp_lg_u32 s3, 2\ns_cbranch_scc1 L_cpf')
        A('s_getpc_b64 s[8:9]')
        A.label('L_pc')
        A(f's_lshr_b32 s4, s2, 3\ns_and_b32 s4, s4, 15\ns_lshl_b32 s4, s4, 10\ns_min_u32 s4, s4, L_codeend-L_pc-1024\nv_add_u32 v4, s4, v18')
        A('global_load_dwordx4 v[144:147], v4, s[8:9]')
        A.label('L_cpf')
    HH = lambda m: [T_(G_, 4 * m), ('s2', 3, 2, m)]
    CC = ('s2', 5, 3); GG = ('s2', 1, 2)
    HL = lambda m: [('s2', 0, 1, 4 * m), ('s2', 3, 2, m)]
    B_ = ('s2', 0, 1)
    srd(52, 24, 8 << 20)
    addr(33, [HI + (8 * 2048,), LOf + (16,)], HH(128 * 2048) + [T_(CW, 32 * 2048), T_(CC, 256)], tmp=4)
    addr(27, [(0, 6, 16)], [T_(G_, 32 * SL), T_(C_, SL), T_(CW, 1024)], OP, tmp=4)
    addr(28, [(5, 1, 32)], [T_(CW, 64)], tmp=4)
    addr(31, [(1, 5, SL), (0, 1, 16)], [T_(G_, 32 * SL), T_(C_, 128), T_(CW, 32)], OP, tmp=4)
    addr(29, [(2, 1, 512 * OST), HI + (OST,), (0, 1, 16)], [T_(GG, 128 * OST)] + HL(16 * OST) + [T_(CW, 4 * OST)], O2, tmp=4)
    addr(17, [(0, 3, 16), (5, 1, 8)], [T_(G_, 128 * OST), T_(C_, 4 * OST), T_(CW, OST)], O2, tmp=4)
    sexpr('s4', HH(8 * SL) + [T_(CC, SL)], AP)
    A('v_add_u32 v30, s4, v18')
    sexpr('s4', [T_(CT_, 128 * SL), T_(CG, 8 * SL), T_(RG8, SL)], MODR)
    A('v_add_u32 v32, s4, v18')
    addr(36, [(0, 3, 8), (4, 1, 4), (5, 1, 2)], [T_(B_, 2048), T_(C_, 64)], tmp=4)
    addr(26, [(5, 1, 16), (0, 2, 32)], [T_(B_, 4096), T_(C_, 128)], tmp=4)
    addr(37, [(5, 1, 16), (0, 5, 128)], [T_(B_, 4096)], tmp=4)
    addr(38, [(3, 3, 8 * SL), (0, 3, 16)], [T_(CC, SL), T_(B_, 512), ('s2', 3, 2, 128)], AP, tmp=4)
    addr(34, [(3, 3, SL), (0, 3, 16)], [T_(CC, 8 * SL), T_(B_, 512), ('s2', 3, 2, 128)], MODR, tmp=4)
    GA = 20; SBr = 21; Ur = 22; GB = 23; XO = 24; B2r = 25; CU = 48
    A('s_cmp_lg_u32 s3, 1\ns_cbranch_scc1 L_c4')
    A(f'global_load_ushort v{XO}, v36, s[16:17]')
    A(f'v_mov_b32 v7, 0\nglobal_load_ushort v{B2r}, v7, s[34:35]')
    A.label('L_c4')
    def sums_publish(r, base):
        tred(32, [(r, r + 3), (r + 1, r + 4), (r + 2, r + 5)])
        A(f'v_mov_b32 v{r+3}, s60')
        red('v_add_f32', [r, r + 1, r + 2], [X1_, X2_, HM])
        for j in range(3): A(f'v_add_f32_dpp v{r+j}, v{r+j}, v{r+j} row_bcast:15 row_mask:0xa bank_mask:0xf')
        A(f's_mov_b32 s7, {base}\ns_mov_b32 exec_lo, 0xf0000\ns_mov_b32 exec_hi, 0xf0000')
        locstore(r, 26, 's7')
        A('s_mov_b64 exec, -1')
    A('s_cmp_lg_u32 s3, 3\ns_cbranch_scc1 L_c5')
    lds_spin(C_ST, 8, 4, sleep=4)
    A(f'v_lshlrev_b32 v4, 3, v0\nds_read_b64 v[8:9], v4 offset:{LST}')
    A(f's_mov_b32 s7, {hx(f2u(LOG2E))}')
    A('s_waitcnt lgkmcnt(0)')
    A('v_mov_b32 v4, v8\nv_mov_b32 v39, v8')
    red('v_max_f32', [4], [R8, 'p16', 'p32'], [6])
    A('v_sub_f32 v5, v8, v4\nv_mul_f32 v5, s7, v5\nv_exp_f32 v5, v5\nv_mul_f32 v5, v5, v9')
    red('v_add_f32', [5], [R8, 'p16', 'p32'], [6])
    A('s_getreg_b32 s67, hwreg(HW_REG_XCC_ID, 0, 4)')
    A(f'v_mov_b32 v6, s67\nv_mov_b32 v7, s60')
    addr(12, [(0, 6, 16)], [T_(G_, 4096), T_(C_, 128)], ST)
    A('s_mov_b64 exec, 0xff')
    wsstore(4, 12, fl=LOC)
    A('s_mov_b64 exec, -1')
    addr(12, [(0, 6, 16)], [T_(G_, 4096)], ST)
    lds_spin(C_V, 8, 8, sleep=4)
    gather(GR, 4, 12, [1024 * i for i in range(4)], 8, full=True, net=True)
    for i in range(4): A(f'v_xor_b32 v{GR+4*i+2}, s67, v{GR+4*i+2}')
    A(f'v_or3_b32 v4, v{GR+2}, v{GR+6}, v{GR+10}\nv_or_b32 v4, v4, v{GR+14}\nv_cmp_ne_u32 vcc, 0, v4')
    A('s_or_b32 s4, vcc_lo, vcc_hi\nv_mov_b32 v4, s4\nv_mov_b32 v5, 0')
    A(f'ds_write_b32 v5, v4 offset:{C_H}')
    A(f'v_max3_f32 v4, v{GR}, v{GR+4}, v{GR+8}\nv_max_f32 v4, v4, v{GR+12}')
    red('v_max_f32', [4], [R8, 'p16', 'p32'], [6])
    for i in range(4): A(f'v_sub_f32 v{8+i}, v{GR+4*i}, v4')
    for i in range(4): A(f'v_mul_f32 v{8+i}, s7, v{8+i}')
    for i in range(4): A(f'v_exp_f32 v{8+i}, v{8+i}')
    A(f'v_mul_f32 v5, v8, v{GR+1}')
    for i in range(1, 4): A(f'v_fmac_f32 v5, v{8+i}, v{GR+4*i+1}')
    red('v_add_f32', [5], [R8, 'p16', 'p32'], [6])
    A('v_rcp_f32 v5, v5\nv_sub_f32 v6, v39, v4\nv_mul_f32 v6, s7, v6\nv_exp_f32 v6, v6\nv_mul_f32 v6, v6, v5')
    addr(7, [(0, 3, 32), (3, 3, 4)], tmp=8)
    A(f'ds_write_b32 v7, v6 offset:{LF}')
    lds_inc(C_F, 8)
    A.label('L_c5')
    def preload(n, lab):
        A(f's_and_b32 s4, s2, 7\ns_cmp_ge_u32 s4, 2\ns_cbranch_scc1 {lab}')
        A(f's_sub_u32 s4, s3, 1\ns_cmp_lt_u32 s4, 2\ns_cbranch_scc1 {lab}')
        for half in range(2):
            A(f's_and_b32 s4, s3, 1\ns_mul_i32 s4, s4, {NB*512}\ns_add_u32 s4, s4, {half*NB*256}\nv_add_u32 v4, s4, v18\nv_add_u32 v6, {TB}, v4')
            gather(GR, NB // 4, 6, [1024 * i for i in range(NB // 4)], 5)
            for i in range(NB // 4): A(f'ds_write_b128 v4, {v(GR+4*i,4)} offset:{LT+1024*i}')
        lds_inc(C_PL, 8); lds_inc(C_PL, 8)
        A.label(lab)
    if PLD == 2:
        lds_spin(C_V, 8, 4, sleep=4)
        preload(2, 'L_pl2')
    if not r1st: stamp(8)
    lds_spin(C_XS, 8, 4, sleep=2)
    if PT1 == 1: A('s_cmp_lg_u32 s3, 2\ns_cbranch_scc1 L_pre1')
    if PT1 < 2: wsload(136, 31, 0)
    if PT1 >= 5:
        m_ = {5: 0x01010101, 6: 0x00010001, 7: 0x11111111}[PT1]
        A(f's_cmp_lg_u32 s3, 2\ns_cbranch_scc1 L_pre1\ns_mov_b32 exec_lo, {m_}\ns_mov_b32 exec_hi, {m_ | 0x40000000}')
        wsload(136, 31, 0)
        A('s_mov_b64 exec, -1')
    if PT1 in (3, 4): A(f'buffer_load_dwordx4 v[136:139], v27, s[44:47], 0 offen {"nt" if PT1 == 3 else "sc1"}')
    A.label('L_pre1')
    A('s_cmp_lg_u32 s3, 1\ns_cbranch_scc1 L_pre2')
    A('s_and_b32 s4, s2, 7\ns_cmp_ge_u32 s4, 2\ns_cbranch_scc1 L_pre2')
    wsload(140, 37, XS); wsload(144, 37, CS)
    A.label('L_pre2')
    def mr_pub():
        A('s_cmp_lg_u32 s3, 0\ns_cbranch_scc1 L_pre3')
        lds_spin(C_TB, 4, 4)
        red4_publish(32, LRED2, False)
        A.label('L_pre3')
    if MRP == 0: mr_pub()
    if O1:
        addr(39, [(0, 1, 16), (5, 1, 8)], [T_(CW, 32)], tmp=4)
        addr(17, [(0, 6, 16)], [T_(G_, 4096), T_(C_, 128)], O2)
    lds_spin(C_WO, WOC, 4, sleep=2)
    tile_loads(W2R, 33, 's[52:55]', 2048)
    if MRP == 1: mr_pub()
    addr(2, [(5, 1, 512), (1, 4, 16)], [T_(CW, 1024)], LV, tmp=1)
    A(f'v_and_b32 v1, 1, v0\nv_mul_u32_u24 v1, 384, v1\nv_xor_b32 v2, v2, v1\nv_add_u32 v1, {4*NL*1024}, v2')
    lds_spin(C_F, 1, 12)
    A(f'ds_read_b32 v35, v13 offset:{C_H}')
    A(f'ds_read_b128 v[4:7], v28 offset:{LF}\nds_read_b128 v[8:11], v28 offset:{LF+16}')
    A('s_waitcnt lgkmcnt(0)\nv_readfirstlane_b32 s67, v35')
    A('s_barrier')
    stamp(9)
    for w in range(8): A(f'ds_read_b128 {v(GR+4*w,4)}, v{2 if w < 4 else 1} offset:{NL*1024*(w%4)}')
    for w in range(8):
        A(f's_waitcnt lgkmcnt({7-w})')
        sel = 'op_sel:[0,1,0] op_sel_hi:[1,1,1]' if w & 1 else 'op_sel:[0,0,0] op_sel_hi:[1,0,1]'
        for k in (0, 2):
            if w == 0: A(f'v_pk_mul_f32 {v(12+k,2)}, {v(GR+k,2)}, v[4:5] op_sel_hi:[1,0]')
            else: A(f'v_pk_fma_f32 {v(12+k,2)}, {v(GR+4*w+k,2)}, {v(4+(w&~1),2)}, {v(12+k,2)} {sel}')
    embed(4, [12, 13, 14, 15], False)
    locstore(4, 27)
    A('v_mov_b32 v9, s60\nv_mov_b32 v10, 0\nv_mov_b32 v11, 1')
    spin(136, 31, [0], 12, net=True, sleep=OS)
    if r1st == 3: stamp(7)
    tred(32, [(136, 138), (137, 139)])
    tred(16, [(136, 137)])
    red('v_add_f32', [136], ['row_ror:2', 'row_ror:4', R8])
    A('v_mov_b32 v137, v136\nv_permlane16_swap_b32 v136, v137\nv_cvt_pk_bf16_f32 v8, v136, v137')
    A(f's_mov_b32 exec_lo, {255 if O2F else 3}\ns_mov_b32 exec_hi, {255 if O2F else 3}')
    if O1:
        A(f'ds_write_b64 v39, v[8:9] offset:{LXS}\ns_mov_b64 exec, 1\nds_add_rtn_u32 v11, v10, v11 offset:{C_O}\ns_mov_b64 exec, 0xff')
        A(f'ds_read_b128 v[4:7], v18 offset:{LXS}\ns_waitcnt lgkmcnt(0)\nv_readfirstlane_b32 s4, v11\ns_cmp_lg_u32 s4, 3\ns_cbranch_scc1 L_o1')
        A('buffer_store_dwordx4 v[4:7], v17, s[44:47], 0 offen sc1')
        A.label('L_o1')
    elif not abl & 32: A('buffer_store_dwordx2 v[8:9], v17, s[44:47], 0 offen sc1')
    A('s_mov_b64 exec, -1')
    stamp(10)
    if MRP == 2: mr_pub()
    perm_all(BF, W2R)
    spin(GR, 29, [0], 12, full=2, sleep=GS)
    stamp(11)
    for k in range(4): A(f'v_mov_b32_dpp v{4+k}, v{GR+2*(k&1)} quad_perm:{"[0,0,2,2]" if k < 2 else "[1,1,3,3]"} {MK}')
    for n in range(8): mfma(AC2 + 4 * n, 4, BF + 4 * n, True)
    select_out(8, AC2)
    A(f'ds_write_b128 v16, v[8:11] offset:{LRED}')
    A('s_waitcnt lgkmcnt(0)')
    A('s_barrier')
    A('s_cmp_lg_u32 s3, 0\ns_cbranch_scc1 L_c6')
    red4_publish(30, LRED, False)
    A.label('L_c6')
    if PLD == 1: preload(2, 'L_pl1')
    A('s_and_b32 s4, s2, 7\ns_cmp_ge_u32 s4, 2\ns_cbranch_scc1 L_c7')
    A('s_cmp_eq_u32 s3, 1\ns_cbranch_scc1 L_fin')
    A('s_cmp_lg_u32 s3, 2\ns_cbranch_scc1 L_c7')
    def sums_get(base, d0, mid=None):
        spin(GR, 37, [base], 12, full=1, mid=mid)
        red('v_add_f32', [GR, GR + 1, GR + 2], [X1_, X2_, HM, RM, 'p16'], [GR + 4, GR + 5, GR + 6])
        for j in range(3): A(f'v_mul_f32 v{d0+j}, {hx(f2u(1.0/1024))}, v{GR+j}\nv_mul_f32 v{d0+3+j}, {hx(f2u(1.0/1024))}, v{GR+j}')
        for j in range(3): A(f'v_permlane32_swap_b32 v{d0+j}, v{d0+3+j}')
    spin(GR, 34, [m * 64 * SL for m in range(4)], 5)
    tred(32, [(GR + 4 * m + 2 * j, GR + 4 * m + 2 * j + 1) for m in range(4) for j in range(2)])
    tred(16, [(GR + 4 * m, GR + 4 * m + 2) for m in range(4)])
    for m in range(4): A(f'v_add_f32_dpp v{GA+m}, v{GR+4*m}, v{GR+4*m} {R8} {MK}')
    rnd2(GA, SBr, 4); rnd2(Ur, GB, 5)
    A(f'v_add_f32 v{Ur}, 1.0, v{Ur}'); rnd1(Ur)
    A(f'ds_write_b128 v18, {v(GA,4)} offset:{LRED2}')
    lds_inc(C_MR, 12)
    A(f'v_mov_b32 v4, v{Ur}\nv_mul_f32 v5, v{Ur}, v{Ur}\nv_mul_f32 v6, v{Ur}, v{SBr}\nv_mov_b32 v7, v{SBr}\nv_mul_f32 v8, v{SBr}, v{SBr}\nv_mov_b32 v9, 0')
    sums_publish(4, CS)
    sums_get(CS, CU)
    A(f'v_mov_b32 v4, 0\ns_mov_b64 exec, 1\nds_write_b128 v4, {v(CU,4)} offset:{LRED2+1024}\nds_write_b32 v4, v{CU+4} offset:{LRED2+1040}\ns_mov_b64 exec, -1')
    lds_spin(C_PL, 3, 12)
    lds_inc(C_MR, 12)
    A.label('L_c7')
    stamp(12)
    stamp_flush(13)
    A('s_endpgm')
    A.label('L_fin')
    A(f'v_lshlrev_b32 v{XO}, 16, v{XO}\nv_lshlrev_b32 v{B2r}, 16, v{B2r}')
    lds_spin(C_MR, 1, 12, sleep=0)
    A(f'ds_read_b128 {v(GA,4)}, v18 offset:{LRED2}')
    spin(GR, 38, [64 * SL * i for i in range(4)], 12)
    stamp(12)
    for k in range(4): A(f'v_add_f32 v{4+k}, v{GR+k}, v{GR+4+k}\nv_add_f32 v{8+k}, v{GR+8+k}, v{GR+12+k}')
    for k in range(4): A(f'v_add_f32 v{4+k}, v{4+k}, v{8+k}')
    tred(32, [(4, 5), (6, 7)]); tred(16, [(4, 6)]); red('v_add_f32', [4], [R8])
    if FS: A(f's_waitcnt lgkmcnt(0)\nv_fmac_f32 v{XO}, v4, v{GA}')
    else:
        rnd1(4)
        A(f's_waitcnt lgkmcnt(0)\nv_mul_f32 v4, v4, v{GA}'); rnd1(4)
        A(f'v_add_f32 v{XO}, v{XO}, v4'); rnd1(XO)
    A(f'v_mov_b32 v4, v{XO}\nv_mul_f32 v5, v{XO}, v{XO}\nv_mul_f32 v6, v{XO}, v{Ur}\nv_mul_f32 v7, v6, v6\nv_mul_f32 v8, v6, v{Ur}\nv_mul_f32 v9, v6, v{SBr}')
    sums_publish(4, XS)
    def consts():
        lds_spin(C_MR, 2, 12, sleep=0)
        A(f's_mov_b32 s10, {POLL_LIMIT}')
        A(f'ds_read_b128 {v(CU,4)}, v13 offset:{LRED2+1024}\nds_read_b32 v{CU+4}, v13 offset:{LRED2+1040}')
    sums_get(XS, 40, consts)
    A('s_waitcnt lgkmcnt(0)')
    stamp(13)
    if FS:
        A(f'v_fma_f32 v5, -v40, v40, v41\nv_fma_f32 v42, -v40, v{CU}, v42\nv_max_f32 v5, 0, v5\nv_mul_f32 v10, v40, v{CU+1}')
        A(f'v_add_f32 v5, {hx(f2u(1e-5))}, v5\nv_fma_f32 v45, -v40, v{CU+2}, v45\nv_rsq_f32 v5, v5\nv_fma_f32 v10, -2.0, v44, v10')
        A(f'v_sub_f32 v12, v{XO}, v40\nv_fma_f32 v43, v40, v10, v43\nv_add_f32 v45, v45, v45\nv_mul_f32 v12, v12, v{Ur}')
        A(f'v_fma_f32 v8, v5, v42, v{CU+3}\nv_fma_f32 v43, v43, v5, v45\nv_fma_f32 v12, v12, v5, v{SBr}\nv_fma_f32 v9, v43, v5, v{CU+4}')
        A(f'v_fma_f32 v9, -v8, v8, v9\nv_sub_f32 v12, v12, v8\nv_max_f32 v9, 0, v9\nv_add_f32 v9, {hx(f2u(1e-5))}, v9\nv_rsq_f32 v9, v9')
        A(f'v_fmac_f32 v{XO}, v{B2r}, v{GB}')
        A('v_mul_f32 v12, v12, v9'); rnd1(12)
    else:
        A('v_mov_b32 v4, v40\nv_fma_f32 v5, -v40, v40, v41\nv_max_f32 v5, 0, v5')
        sigma(4)
        A(f'v_fma_f32 v42, -v4, v{CU}, v42')
        A(f'v_fma_f32 v45, -v4, v{CU+2}, v45')
        A(f'v_mul_f32 v10, v4, v{CU+1}\nv_fma_f32 v10, -2.0, v44, v10\nv_fma_f32 v43, v4, v10, v43')
        A(f'v_sub_f32 v12, v{XO}, v4'); rnd1(12)
        A(f'v_fma_f32 v8, v5, v42, v{CU+3}')
        A(f'v_mul_f32 v43, v43, v5\nv_fma_f32 v43, 2.0, v45, v43\nv_fma_f32 v9, v43, v5, v{CU+4}')
        A('v_mul_f32 v12, v12, v5'); rnd1(12)
        A('v_fma_f32 v9, -v8, v8, v9\nv_max_f32 v9, 0, v9')
        A(f'v_mul_f32 v12, v12, v{Ur}'); rnd1(12)
        sigma(8)
        A(f'v_add_f32 v12, v12, v{SBr}'); rnd1(12)
        A('v_sub_f32 v12, v12, v8'); rnd1(12)
        A('v_mul_f32 v12, v12, v9'); rnd1(12)
    A(f'v_bfe_u32 v13, v12, 16, 15\nv_subrev_u32 v13, {E0*128}, v13\nv_lshrrev_b32 v14, 31, v12')
    A(f'v_cmp_lt_u32 vcc, {NB*128-1 if not force_fb else 128*17}, v13')
    A(f'v_min_u32 v13, {NB*128-1}, v13\nv_mul_u32_u24 v14, {NB*128}, v14\nv_add_lshl_u32 v13, v13, v14, 2')
    A(f'ds_read_b32 v15, v13 offset:{LT}')
    if not abl: A('s_cbranch_vccnz L_fb0')
    A.label('L_nofb')
    A('s_waitcnt lgkmcnt(0)')
    if FS: A(f'v_fma_f32 v15, v15, v{GB}, v{XO}')
    else:
        rnd1(15)
        A(f'v_add_f32 v15, v15, v{B2r}'); rnd1(15)
        A(f'v_mul_f32 v15, v15, v{GB}'); rnd1(15)
        A(f'v_add_f32 v15, v15, v{XO}')
    A('v_cvt_pk_bf16_f32 v15, v15, v15')
    A('s_mov_b32 exec_lo, 0x00ff00ff\ns_mov_b32 exec_hi, 0x00ff00ff')
    A('global_store_short v36, v15, s[40:41]')
    A('s_cmp_lg_u32 s2, 0\ns_cbranch_scc1 L_f2')
    A('v_mov_b32 v4, 0\nv_mov_b32 v5, s60\ns_mov_b64 exec, 1')
    A('buffer_store_dword v5, v4, s[44:47], 0 offen' + (' sc1' if GSC else ''))
    if enc >= 0:
        if enc == 99: A('s_memrealtime s[74:75]\ns_waitcnt lgkmcnt(0)')
        if enc == 98: A('s_mov_b32 s74, s70')
        A(f's_sub_u32 s5, s74, s70\ns_add_u32 s5, s5, {hold*100}')
        A.label('L_hold')
        A(f's_memrealtime s[72:73]\ns_waitcnt lgkmcnt(0)\ns_sub_u32 s4, s72, s70\ns_cmp_lt_u32 s4, s5\ns_cbranch_scc1 L_hold')
    elif hold:
        A.label('L_hold')
        A(f's_memrealtime s[72:73]\ns_waitcnt lgkmcnt(0)\ns_sub_u32 s4, s72, s70\ns_cmp_lt_u32 s4, {hold*100}\ns_cbranch_scc1 L_hold')
    A.label('L_f2')
    if stamps: A(f's_memrealtime s[70:71]\ns_waitcnt lgkmcnt(0)\ns_mov_b32 s{SB+1}, s70')
    stamp_flush(14)
    A.label('L_end')
    A('s_endpgm')
    for L1, L2, r, vaddr, soff in slow:
        A.label(L1)
        wsstore(r, vaddr, soff)
        A(f's_branch {L2}')
    for X, Y, E, net in cold:
        A.label(X)
        A(f's_cmp_eq_u32 s10, 0\ns_cbranch_scc1 {X}e')
        if net: A('buffer_wbl2 sc1\ns_waitcnt vmcnt(0)\nbuffer_inv sc1\ns_waitcnt vmcnt(0)')
        A(f's_branch {Y}')
        A.label(X + 'e')
        A(f's_waitcnt vmcnt(0)\ns_branch {E}')
    A.label('L_fb0')
    A('s_mov_b64 s[66:67], vcc')
    A('s_waitcnt lgkmcnt(0)')
    tab_consts()
    A.label('L_fb')
    A('s_ff1_i32_b64 s4, s[66:67]')
    A('v_readlane_b32 s64, v12, s4')
    A('s_mov_b32 s6, 0\nv_mov_b32 v13, 0')
    A('s_mov_b32 s65, s64')
    A.label('L_fb2')
    tab_load('s6'); tab_unpack(); tab_eval()
    A(f'v_add_f32 v13, v13, v{TA}')
    A('s_add_u32 s6, s6, 1\ns_cmp_lt_u32 s6, 4\ns_cbranch_scc1 L_fb2')
    red('v_add_f32', [13], [X1_, X2_, HM, RM, 'p16', 'p32'], [14])
    A('v_cmp_eq_u32 vcc, s64, v12')
    A('v_cndmask_b32 v15, v15, v13, vcc')
    A('s_andn2_b64 s[66:67], s[66:67], vcc')
    A('s_cbranch_scc1 L_fb')
    A('s_branch L_nofb')
    A.label('L_tab')
    A('s_cmp_ge_u32 s66, s5\ns_cbranch_scc1 L_tabx')
    A('s_setprio 0')
    A.label('L_tab1')
    A('s_mov_b32 s65, s64')
    if notab & 1: A('s_sleep 9')
    else: tab_eval()
    A('v_lshrrev_b32 v4, 2, v0\nv_add_u32 v4, s6, v4')
    red('v_add_f32', [TA], [X1_, X2_, HM, RM])
    A('s_mov_b32 exec_lo, 0x00010001\ns_mov_b32 exec_hi, 0x00010001')
    A(f'ds_write_b32 v4, v{TA} offset:{LTP}')
    A('s_mov_b64 exec, -1')
    A('s_add_u32 s6, s6, 64\ns_add_u32 s64, s64, 0x10000\ns_add_u32 s66, s66, 1\ns_cmp_lt_u32 s66, s5')
    A('s_cbranch_scc1 L_tab1')
    A('s_setprio 3')
    A.label('L_tabx')
    A('s_setpc_b64 s[68:69]')
    A.label('L_codeend')
    A.raw('.section .rodata,"a"'); A.raw('.p2align 6'); A.raw(f'.amdhsa_kernel {KN}')
    A.raw('  .amdhsa_next_free_vgpr 168'); A.raw('  .amdhsa_next_free_sgpr 102'); A.raw('  .amdhsa_accum_offset 168')
    A.raw('  .amdhsa_group_segment_fixed_size 0'); A.raw('  .amdhsa_kernarg_size 120'); A.raw('  .amdhsa_user_sgpr_count 2')
    A.raw('  .amdhsa_user_sgpr_kernarg_segment_ptr 1'); A.raw('  .amdhsa_system_sgpr_workgroup_id_x 1'); A.raw('.end_amdhsa_kernel')
    return A.text()

if __name__ == '__main__':
    open('k17.s', 'w').write(gen())
    open('k17_st.s', 'w').write(gen(stamps=1))
    open('k17_fb.s', 'w').write(gen(force_fb=1))
```

```python
import sys, struct
from asmlib import Asm
KN = 'adaLN_cond__gqa_block_cached__mixer_token_mlp__decode_kernel'

def f2u(x): return struct.unpack('<I', struct.pack('<f', x))[0]
def hx(x): return '0x%08x' % (x & 0xffffffff)
LOG2E = 1.4426950408889634
STAMP_OFF = 200 << 20
LQ = 0; LST = 2048; LF = 2560; LCNT = 2816; LXS = 2880; LRED = 3072; LTP = 7168; LRED2 = 9216; LT = 13312
C_P2, C_Q, C_ST, C_XS, C_TB, C_WO, C_V, C_PL, C_MR, C_H, C_T1, C_T2, C_O, C_F, C_NV = [LCNT + 4 * i for i in range(15)]
NB = 20; E0 = 111
LV = LT + NB * 1024
POLL_LIMIT = 131072
HEADER = """; adaLN -> GQA decode attention -> out-proj -> adaLN -> token-mixer MLP, one persistent launch.
"""
def v(a, n=1): return f'v{a}' if n == 1 else f'v[{a}:{a+n-1}]'
def log2(x):
    l = x.bit_length() - 1
    return l if (1 << l) == x else None

def gen(stamps=0, D1=3, D2=3, D3=4, N3=24, STAT=20, force_fb=0, abl=0, N2=3,
        ROT=0, GRP=0, SL=8448, cpf=1, OS=0, GS=0, nost=0, NET=128, loc=1, r1st=0, NL=14, cpf0=1, tlb=0, K0=3, B0e=0,
        WOAT=31, WOC=8, PREAT=31, MRP=2, PT1=1, O2F=0, OST=32, hold=0, TH_=17, TQ=39, TGC=8, O1=1, PR=99, DQ=0, QO=0, norsc=0, FS=1, GSC=0, notab=0, DA=0, NA0=0, NA1=0, ALT=0, PACE=0, B0p=2, enc=-1, PLD=1):
    ST = 0x8000; CS = 0x10000; XS = 0x12000; HR = 0x14000; TB = 0x18000; Q2 = 0x20000; O2 = 0x40000
    SLOT = 0x60000
    MODP = SLOT; QP = SLOT + 1024; MODR = SLOT + 2048; AP = SLOT + 3072; OP = SLOT + 4096
    WS_USED = SLOT + 256 * SL
    LOC = '' if loc else 'sc1'
    A = Asm()
    A.raw(HEADER.rstrip())
    A.raw(f'; @launch grid=(256,1,1) block=(768,1,1) lds={LV + 8 * NL * 1024}')
    A.raw('.amdgcn_target "amdgcn-amd-amdhsa--gfx950"')
    A.raw('.text'); A.raw(f'.globl {KN}'); A.raw('.p2align 8'); A.raw(f'.type {KN},@function'); A.raw(f'{KN}:')
    SB = 72
    def stamp(i):
        if enc == i: A('s_memrealtime s[74:75]\ns_waitcnt lgkmcnt(0)')
        if stamps: A(f's_memrealtime s[70:71]\ns_waitcnt lgkmcnt(0)\ns_mov_b32 s{SB+i}, s70')
    def stamp_flush(n):
        if not stamps: return
        A('s_waitcnt lgkmcnt(0) vmcnt(0)')
        A('s_mov_b64 exec, 1')
        A(f's_mul_i32 s4, s2, 12\ns_add_u32 s4, s4, s3\ns_lshl_b32 s4, s4, 7\ns_add_u32 s4, s4, {STAMP_OFF}')
        A('v_mov_b32 v1, s4\nv_mov_b32 v3, 0')
        for i in range(n):
            A(f'v_mov_b32 v2, s{SB+i}')
            A(f'global_store_dwordx2 v1, v[2:3], s[42:43] offset:{8*i}')
            A('s_nop 1')
    def sexpr(dst, terms, const=0, tmp='s5'):
        first = True
        for src, pos, n, mult in terms:
            t = dst if first else tmp
            A(f's_bfe_u32 {t}, {src}, {hex((n << 16) | pos)}')
            if mult != 1:
                l = log2(mult)
                A(f's_lshl_b32 {t}, {t}, {l}' if l is not None else f's_mul_i32 {t}, {t}, {mult}')
            if not first: A(f's_add_u32 {dst}, {dst}, {tmp}')
            first = False
        if first: A(f's_mov_b32 {dst}, {const}')
        elif const: A(f's_add_u32 {dst}, {dst}, {const}')
    def addr(dst, lane, sterms=(), const=0, tmp=None):
        has_s = bool(sterms) or const
        if has_s: sexpr('s4', sterms, const)
        acc = None
        for pos, n, mult in lane:
            l = log2(mult)
            t = dst if acc is None and not has_s else tmp
            if pos == 0 and n == 6: src = 'v0'
            elif pos + n == 6: A(f'v_lshrrev_b32 v{t}, {pos}, v0'); src = f'v{t}'
            elif pos == 0: A(f'v_and_b32 v{t}, {(1<<n)-1}, v0'); src = f'v{t}'
            else: A(f'v_bfe_u32 v{t}, v0, {pos}, {n}'); src = f'v{t}'
            prev = acc if acc is not None else ('s4' if has_s else None)
            if prev is None:
                A(f'v_lshlrev_b32 v{dst}, {l}, {src}' if l is not None else f'v_mul_u32_u24 v{dst}, {mult}, {src}')
            elif l is not None:
                A(f'v_lshl_add_u32 v{dst}, {src}, {l}, {prev}')
            else:
                A(f'v_mul_u32_u24 v{t}, {mult}, {src}\nv_add_u32 v{dst}, {prev}, v{t}')
            acc = f'v{dst}'
    def rnd2(a, b, tmp):
        A(f'v_cvt_pk_bf16_f32 v{tmp}, v{a}, v{b}\nv_lshlrev_b32 v{a}, 16, v{tmp}\nv_and_b32 v{b}, 0xffff0000, v{tmp}')
    def rnd1(a):
        A(f'v_cvt_pk_bf16_f32 v{a}, v{a}, v{a}\nv_and_b32 v{a}, 0xffff0000, v{a}')
    MK = 'row_mask:0xf bank_mask:0xf'
    X1_ = 'quad_perm:[1,0,3,2]'; X2_ = 'quad_perm:[2,3,0,1]'; HM = 'row_half_mirror'; RM = 'row_mirror'; R8 = 'row_ror:8'
    def red(op, regs, steps, tmp=None):
        for s in steps:
            if s in ('p16', 'p32'):
                for r, t in zip(regs, tmp): A(f'v_mov_b32 v{t}, v{r}')
                for r, t in zip(regs, tmp): A(f'v_permlane{s[1:]}_swap_b32 v{r}, v{t}')
                for r, t in zip(regs, tmp): A(f'{op} v{r}, v{r}, v{t}')
            else:
                for r in regs: A(f'{op}_dpp v{r}, v{r}, v{r} {s} {MK}')
    def tred(kind, pairs):
        for a, b in pairs: A(f'v_permlane{kind}_swap_b32 v{a}, v{b}')
        for a, b in pairs: A(f'v_add_f32 v{a}, v{a}, v{b}')
    def embed(dst, srcs, rnd=True):
        if rnd:
            for k, s in enumerate(srcs): A(f'v_add_u32 v{dst+k}, 0x80, v{s}')
            srcs = range(dst, dst + 4)
        for k, s in enumerate(srcs): A(f'v_bfi_b32 v{dst+k}, v3, s{56+k}, v{s}')
    def wsload(r, vaddr, o):
        so = o & ~0xfff; io = o & 0xfff
        if so: A(f's_mov_b32 s11, {so}')
        A(f'buffer_load_dwordx4 {v(r,4)}, v{vaddr}, s[44:47], {"s11" if so else "0"} offen offset:{io} sc1')
    mk = lambda i: f's[{86+2*i}:{87+2*i}]'
    def check(r, i, tmp, full):
        if full == 2:
            A(f'v_xor_b32 v{tmp}, s60, v{r+1}\nv_bitop3_b32 v{tmp}, v{tmp}, v{r+3}, s60 bitop3:0xf6\nv_cmp_ne_u32 {mk(i)}, 0, v{tmp}')
        elif full: A(f'v_cmp_ne_u32 {mk(i)}, s60, v{r+3}')
        else:
            for k in range(4): A(f'v_xor_b32 v{r+k}, s{56+k}, v{r+k}')
            A(f'v_or3_b32 v{tmp}, v{r}, v{r+1}, v{r+2}')
            A(f'v_bitop3_b32 v{tmp}, v{tmp}, v{r+3}, v3 bitop3:0xa8')
            A(f'v_cmp_ne_u32 {mk(i)}, 0, v{tmp}')
    def spin(dst, vaddr, offs, tmp, full=False, net=False, sleep=0, mid=None):
        if abl & 2:
            if mid: A('s_waitcnt vmcnt(0)'); mid()
            return
        n = len(offs)
        L = A.newlabel('Lsp'); E = A.newlabel('Lspe'); R = A.newlabel('Lspr')
        for i, o in enumerate(offs): A(f's_mov_b32 s{88+i}, {o & ~0xfff}')
        A(f's_mov_b32 s10, {POLL_LIMIT}')
        def loads():
            for i, o in enumerate(offs): A(f'buffer_load_dwordx4 {v(dst+4*i,4)}, v{vaddr}, s[44:47], s{88+i} offen offset:{o & 0xfff} sc1')
        if mid:
            loads(); mid(); A(f's_branch {R}')
        A.label(L)
        loads()
        A.label(R)
        A('s_sub_u32 s10, s10, 1')
        A(f's_and_b32 s8, s10, {NET-1}')
        X = A.newlabel('Lspx'); Y = A.newlabel('Lspy')
        A(f's_cbranch_scc0 {X}')
        A.label(Y)
        for i in range(n):
            r = dst + 4 * i
            A(f's_waitcnt vmcnt({n-1-i})')
            if full == 2: A(f'v_xor_b32 v{tmp}, s60, v{r+1}\nv_bitop3_b32 v{tmp}, v{tmp}, v{r+3}, s60 bitop3:0xf6')
            elif full: A(f'v_xor_b32 v{tmp}, s60, v{r+3}')
            else:
                for k in range(4):
                    if i == 0 and k == 0: A(f'v_xor_b32 v{tmp}, s56, v{r}')
                    else: A(f'v_bitop3_b32 v{tmp}, v{tmp}, v{r+k}, s{56+k} bitop3:0xf6')
        if not full: A(f'v_and_b32 v{tmp}, 0xff, v{tmp}')
        A(f'v_cmp_ne_u32 vcc, 0, v{tmp}')
        if sleep:
            A(f's_cbranch_vccz {E}\ns_sleep {sleep}\ns_branch {L}')
        else:
            A.raw('    s_cbranch_vccnz ' + L)
        A.label(E)
        cold.append((X, Y, E, net))
    cold = []; slow = []
    def gather(dst, n, vaddr, offs, tmp, full=False, th=0, mid=None, kind=2, sleep=0, net=False, extra=0, retry=None, phase=3):
        if abl & kind:
            if mid: A('s_waitcnt vmcnt(0)'); mid()
            return
        L = A.newlabel('Lpoll'); E = A.newlabel('Lpend')
        if phase & 1:
            for i in range(n): wsload(dst + 4 * i, vaddr, offs[i])
            if mid: mid()
            for i in range(n):
                A(f's_waitcnt vmcnt({n-1-i+extra})'); check(dst + 4 * i, i, tmp, full)
        if not phase & 2: return
        A(f's_mov_b32 s10, {POLL_LIMIT}')
        if phase == 2:
            L0 = A.newlabel('Lp0'); A(f's_branch {L0}')
        A.label(L)
        if n == 1:
            if th: A(f's_bcnt1_i32_b64 s8, {mk(0)}\ns_cmp_le_u32 s8, {th}')
            else: A(f's_cmp_eq_u64 {mk(0)}, 0')
            A(f's_cbranch_scc1 {E}')
        else:
            A(f's_or_b64 s[8:9], {mk(0)}, {mk(1)}')
            for i in range(2, n): A(f's_or_b64 s[8:9], s[8:9], {mk(i)}')
            A(f's_cbranch_scc0 {E}')
        A('s_sub_u32 s10, s10, 1')
        A(f's_cbranch_scc1 {E}')
        if retry: retry()
        if sleep: A(f's_sleep {sleep}')
        if net:
            Nn = A.newlabel('Lnet')
            A(f's_and_b32 s8, s10, {NET-1}\ns_cbranch_scc1 {Nn}')
            A('s_mov_b64 exec, -1\nbuffer_wbl2 sc1\ns_waitcnt vmcnt(0)\nbuffer_inv sc1\ns_waitcnt vmcnt(0)')
            A.label(Nn)
        if phase == 2: A.label(L0)
        for i in range(n):
            A(f's_mov_b64 exec, {mk(i)}')
            if n > 1:
                S = A.newlabel('Lsk'); A(f's_cbranch_execz {S}')
            wsload(dst + 4 * i, vaddr, offs[i])
            if n > 1: A.label(S)
        if phase == 2 and mid: mid()
        A('s_waitcnt vmcnt(0)')
        for i in range(n):
            if n > 1:
                S = A.newlabel('Lsk'); A(f's_mov_b64 exec, {mk(i)}'); A(f's_cbranch_execz {S}')
            check(dst + 4 * i, i, tmp, full)
            if n > 1: A.label(S)
        A(f's_branch {L}')
        A.label(E)
        A('s_mov_b64 exec, -1')
    def lds_spin(off, val, vt, sleep=1):
        L = A.newlabel('Lspin'); E = A.newlabel('Lspe')
        A(f's_mov_b32 s10, {POLL_LIMIT*20}\nv_mov_b32 v{vt+1}, 0')
        A.label(L)
        A(f'ds_read_b32 v{vt}, v{vt+1} offset:{off}')
        A('s_waitcnt lgkmcnt(0)')
        A(f'v_readfirstlane_b32 s11, v{vt}')
        A(f's_cmp_ge_u32 s11, {val}')
        A(f's_cbranch_scc1 {E}')
        if sleep: A(f's_sleep {sleep}')
        A('s_sub_u32 s10, s10, 1')
        A(f's_cbranch_scc0 {L}')
        A.label(E)
    def lds_inc(off, vt, rtn=False):
        A(f'v_mov_b32 v{vt}, 0\nv_mov_b32 v{vt+1}, 1')
        A('s_waitcnt lgkmcnt(0)')
        A('s_mov_b64 exec, 1')
        if rtn: A(f'ds_add_rtn_u32 v{vt+1}, v{vt}, v{vt+1} offset:{off}')
        else: A(f'ds_add_u32 v{vt}, v{vt+1} offset:{off}')
        A('s_mov_b64 exec, -1')
        if rtn:
            A('s_waitcnt lgkmcnt(0)')
            A(f'v_readfirstlane_b32 s4, v{vt+1}')
    def tile_loads(dst, vaddr, srd, stride, row0=0, rng=range(8)):
        for i in rng:
            o = (row0 + i) * stride
            if o: A(f's_mov_b32 s11, {o}')
            A(f'buffer_load_dwordx4 {v(dst+4*i,4)}, v{vaddr}, {srd}, {"s11" if o else "0"} offen nt')
    def perm_pair(f0, f1, raw, t):
        for b in range(4):
            X = raw + 8 * b + t; Y = X + 4
            A(f'v_perm_b32 v{f0+b}, v{Y}, v{X}, s12')
            A(f'v_perm_b32 v{f1+b}, v{Y}, v{X}, s13')
    def perm_all(dst, raw):
        for t in range(4): perm_pair(dst + 8 * t, dst + 8 * t + 4, raw, t)
    def mfma(acc, a, b, first):
        A(f'v_mfma_f32_16x16x32_bf16 {v(acc,4)}, {v(a,4)}, {v(b,4)}, {"0" if first else v(acc,4)}')
    def select_out(dst, acc):
        for k in range(4): A(f'v_cndmask_b32 v{dst+k}, v{acc+4*k}, v{acc+16+4*k}, s[14:15]')
    stid = [0]
    def wsstore(r, vaddr, soff='0', fl='sc1'):
        stid[0] += 1
        if abl & 32 or (nost >> (stid[0] - 1)) & 1: return
        A(f'buffer_store_dwordx4 {v(r,4)}, v{vaddr}, s[44:47], {soff} offen {fl}')
    def locstore(r, vaddr, soff='0'):
        if not loc: return wsstore(r, vaddr, soff)
        L1 = A.newlabel('Lst'); L2 = A.newlabel('Lst')
        A(f's_cmp_lg_u32 s67, 0\ns_cbranch_scc1 {L1}')
        wsstore(r, vaddr, soff, '')
        A.label(L2)
        slow.append((L1, L2, r, vaddr, soff))
    def tags():
        A('s_add_u32 s60, s60, 0x01010101')
        A('s_and_b32 s56, s60, 0xff\ns_bfe_u32 s57, s60, 0x80008\ns_bfe_u32 s58, s60, 0x80010\ns_lshr_b32 s59, s60, 24')
    def srd(n, base, size):
        A(f's_mov_b32 s{n}, s{base}\ns_mov_b32 s{n+1}, s{base+1}\ns_mov_b32 s{n+2}, {size}\ns_mov_b32 s{n+3}, 0x20000')
    G_ = ('s2', 0, 3); C_ = ('s2', 3, 5); CW = ('s3', 0, 2)
    T_ = lambda f, m: f + (m,)

    A('s_cmp_ge_u32 s2, 256\ns_cbranch_scc1 L_end')
    A('s_load_dwordx16 s[16:31], s[0:1], 0')
    A('s_load_dwordx8 s[32:39], s[0:1], 64')
    A('s_load_dwordx2 s[40:41], s[0:1], 96')
    A('s_load_dwordx2 s[42:43], s[0:1], 112')
    if stamps or hold: A('s_memrealtime s[70:71]')
    A('v_lshrrev_b32 v1, 6, v0')
    A('v_and_b32 v0, 63, v0')
    A('v_readfirstlane_b32 s3, v1')
    A('s_mov_b32 s12, 0x05040100\ns_mov_b32 s13, 0x07060302')
    A('s_cmp_lt_u32 s3, 4')
    A('s_cbranch_scc1 L_ctrl')

    KB = 40; QF = 4; CT = 12; S = 20; T = 36; OA = 136
    USTEP = (1 << 20) if GRP else 32768
    A('s_setprio 1')
    if cpf0:
        A('s_cmp_lg_u32 s3, 4\ns_cbranch_scc1 L_cp0')
        A('s_getpc_b64 s[8:9]')
        A.label('L_pc0')
        A(f's_lshr_b32 s4, s2, 3\ns_lshl_b32 s4, s4, 10\ns_min_u32 s4, s4, L_codeend-L_pc0-1024\nv_lshlrev_b32 v4, 4, v0\nv_add_u32 v4, s4, v4')
        A('global_load_dwordx4 v[32:35], v4, s[8:9]')
        A.label('L_cp0')
    addr(1, [(1, 1, 1024), (2, 2, 256), (4, 2, 32), (0, 1, 16)], tmp=4)
    A('v_lshlrev_b32 v2, 4, v0')
    addr(39, [(1, 3, 256), (4, 2, 32), (0, 1, 16)], tmp=4)
    A('s_sub_u32 s6, s3, 4')
    sexpr('s4', [T_(G_, 1 << 23), T_(C_, 32768 if GRP else 262144), ('s6', 0, 3, 4096)])
    A(f's_lshr_b32 s61, s2, 3\ns_mul_i32 s61, s61, {ROT*USTEP}\ns_and_b32 s61, s61, {8*USTEP-1}')
    A(f's_sub_u32 s5, {64<<20}, s4')
    A('s_mov_b32 s14, 0xaaaaaaaa\ns_mov_b32 s15, 0xaaaaaaaa')
    A('v_mov_b32 v3, 0xffff\nv_mov_b32 v9, 0xffff0000\nv_cndmask_b32 v3, v3, v9, s[14:15]')
    A('s_waitcnt lgkmcnt(0)')
    if stamps: A(f's_mov_b32 s{SB}, s70')
    A('s_add_u32 s48, s18, s4\ns_addc_u32 s49, s19, 0\ns_mov_b32 s50, s5\ns_mov_b32 s51, 0x20000')
    A('s_add_u32 s52, s20, s4\ns_addc_u32 s53, s21, 0\ns_mov_b32 s54, s5\ns_mov_b32 s55, 0x20000')
    issued = [0]; nv = [0]
    def wait_load(k): A(f's_waitcnt vmcnt({max(issued[0] - 1 - k, 0)})')
    def unit(n):
        if n % 4 == 0:
            A('s_mov_b32 s7, s61' if n == 0 else f's_add_u32 s7, s7, {USTEP}\ns_and_b32 s7, s7, {8*USTEP-1}')
    def kload(n):
        d = DA if (DA and NA0 <= n < NA1) else D1
        if ALT and n % ALT == ALT - 1: d -= 1
        if issued[0] >= d and n >= K0: A(f's_waitcnt vmcnt({d-1})')
        unit(n); j = n % 4
        A(f'buffer_load_dwordx4 {v(KB+4*n,4)}, v1, s[48:51], s7 offen offset:{(j>>1)*2048+(j&1)*128} nt')
        issued[0] += 1
        if n == PR: A('s_cmp_lt_u32 s6, 4\ns_cbranch_scc1 L_pr\ns_setprio 2'); A.label('L_pr')
        if n == TH_: lds_inc(C_T1, T)
        if n == TQ: lds_inc(C_T2, T)
    def vslot(n): return KB + 4 * (n % 24)
    dq = [0]
    def dcur(): return dq[0] or (D3 if nv[0] >= N3 else D2)
    def vload():
        n = nv[0]
        A(f's_waitcnt vmcnt({dcur()-1-(1 if ALT and n % ALT == ALT - 1 and n < N3 else 0)})')
        unit(n)
        if n < NL:
            if n % 4 == 0: A(f's_add_u32 m0, s62, {n*1024}')
            A(f'buffer_load_dwordx4 v2, s[52:55], s7 offen offset:{(n%4)*1024} nt lds')
        else:
            A(f'buffer_load_dwordx4 {v(vslot(n),4)}, v2, s[52:55], s7 offen offset:{(n%4)*1024} nt')
        issued[0] += 1; nv[0] += 1
        if n + 32 == PR: A('s_cmp_lt_u32 s6, 4\ns_cbranch_scc1 L_pr\ns_setprio 2'); A.label('L_pr')
        if n + 32 == TQ: lds_inc(C_T2, T)
        if n == WOAT: lds_inc(C_WO, T)
        if n == STAT: lds_inc(C_V, T)
        if n == PREAT: lds_inc(C_XS, T)
    if tlb:
        A('s_cmp_lg_u32 s3, 5\ns_cbranch_scc1 L_tl0')
        A('s_mov_b64 exec, 1\nv_mov_b32 v4, 0')
        A('buffer_load_dword v32, v4, s[52:55], 0 offen nt')
        A('global_load_dword v33, v4, s[40:41]')
        A(f'v_mov_b32 v5, {0x100000}\nglobal_load_dword v34, v5, s[42:43]\nv_mov_b32 v6, {0x220000}\nglobal_load_dword v35, v6, s[42:43]')
        sexpr('s4', [T_(G_, 4 * 128 * 2048), ('s2', 3, 2, 128 * 2048)])
        A('v_mov_b32 v7, s4\nglobal_load_dword v31, v7, s[24:25] nt')
        sexpr('s4', [('s2', 4, 3, 128 * 12288)])
        A('v_mov_b32 v8, s4\nglobal_load_dword v30, v8, s[38:39] nt')
        A(f'v_add_u32 v8, {127*12288}, v8\nglobal_load_dword v29, v8, s[38:39] nt')
        A('global_load_ushort v28, v4, s[34:35]')
        A('s_mov_b64 exec, -1')
        A.label('L_tl0')
    stamp(5)
    for n in range(K0): kload(n)
    A('s_barrier')
    stamp(6)
    A(f's_mul_i32 s62, s6, {NL*1024}\ns_add_u32 s62, s62, {LV}')
    for n in range(K0, 32):
        kload(n)
        if n == D1: stamp(7)
    for n in range(NL): vload()
    stamp(1)
    lds_spin(C_Q, 4, 4)
    stamp(2)
    A(f'ds_read_b128 {v(QF,4)}, v39 offset:{LQ}')
    A(f'ds_read_b128 {v(QF+4,4)}, v39 offset:{LQ+128}')
    A('s_waitcnt lgkmcnt(0)')
    def qk_fin(b, par):
        c = CT + 4 * par
        A(f'v_cndmask_b32 v{T}, v{c+2}, v{c+1}, s[14:15]')
        A(f'v_cndmask_b32 v{S+b}, v{c}, v{c+3}, s[14:15]')
        A(f'v_add_f32_dpp v{S+b}, v{T}, v{S+b} {X1_} {MK}')
    assert NL >= max(D1, D2)
    order = [(b + NL // 2) % 16 for b in range(16)] if QO else list(range(16))
    if DQ: dq[0] = DQ
    for i, b in enumerate(order):
        c = CT + 4 * (i & 1)
        mfma(c, KB + 8 * b, QF, True)
        mfma(c, KB + 8 * b + 4, QF + 4, False)
        if i >= 1: qk_fin(order[i - 1], (i - 1) & 1)
        if QO:
            if i in ((0, 1, 2, 8, 15) if QO == 1 else (0, 1, 2, 3, 9, 15)): vload()
        elif b - NL // 2 in (0, 1, 2) or b == 13: vload()
    qk_fin(order[15], 1)
    A(f's_mov_b32 s4, {hx(f2u(128 ** -0.5 * (1 if norsc < 2 else 1 - 0.02 * norsc)))}')
    for i in range(0, 16, 2):
        if not norsc: rnd2(S + i, S + i + 1, T + (i // 2) % 2)
        A(f'v_mul_f32 v{S+i}, s4, v{S+i}\nv_mul_f32 v{S+i+1}, s4, v{S+i+1}')
        if not norsc: rnd2(S + i, S + i + 1, T + 2 + (i // 2) % 2)
    M = 12; Lr = 13
    A(f'v_max3_f32 v{M}, v{S}, v{S+1}, v{S+2}')
    for i in range(3, 15, 2): A(f'v_max3_f32 v{M}, v{M}, v{S+i}, v{S+i+1}')
    A(f'v_max_f32 v{M}, v{M}, v{S+15}')
    red('v_max_f32', [M], [X1_, 'p16', 'p32'], [T])
    vload()
    A(f's_mov_b32 s4, {hx(f2u(LOG2E))}')
    for i in range(16): A(f'v_sub_f32 v{S+i}, v{S+i}, v{M}')
    for i in range(16): A(f'v_mul_f32 v{S+i}, s4, v{S+i}')
    for i in range(16): A(f'v_exp_f32 v{S+i}, v{S+i}')
    A(f'v_add_f32 v{Lr}, v{S}, v{S+1}')
    for i in range(2, 16): A(f'v_add_f32 v{Lr}, v{Lr}, v{S+i}')
    if QO: vload()
    for i in range(16): A(f'v_cvt_pk_bf16_f32 v{S+i}, v{S+i}, v{S+i}')
    for i in range(16): A(f'v_and_b32 v{S+i}, v3, v{S+i}')
    red('v_add_f32', [Lr], [X1_, 'p16', 'p32'], [T])
    addr(14, [(0, 6, 4)], [('s6', 0, 3, 64)])
    A('s_mov_b64 exec, 0x5555')
    A(f'ds_write_b64 v14, v[{M}:{Lr}] offset:{LST}')
    A('s_mov_b64 exec, -1')
    vload()
    lds_inc(C_ST, T)
    dq[0] = 0
    stamp(3)
    PT = 4
    if NL:
        wait_load(32 + NL - 1)
        A('v_add_u32 v4, s62, v2')
        for n in range(NL): A(f'ds_read_b128 {v(vslot(n),4)}, v4 offset:{n*1024}')
        A('s_waitcnt lgkmcnt(0)')
    for tau in range(4):
        raw = vslot(8 * tau)
        if tau < 3:
            lim = min(32, 8 * tau + 24)
            while nv[0] < lim and (issued[0] - 1 - (32 + 8 * tau + 7)) < dcur(): vload()
            wait_load(32 + 8 * tau + 7)
            for t in range(4):
                f0 = PT + 8 * (t & 1); f1 = f0 + 4
                perm_pair(f0, f1, raw, t)
                mfma(OA + 8 * t, S + 4 * tau, f0, tau == 0)
                mfma(OA + 8 * t + 4, S + 4 * tau, f1, tau == 0)
        else:
            while nv[0] < 32: vload()
            addr(4, [(4, 2, 1024), (0, 4, 16)], [('s6', 0, 3, NL * 1024)], LV, tmp=5)
            A('v_xor_b32 v5, 128, v4')
            FB = vslot(8)
            for b in range(4):
                wait_load(32 + 24 + 2 * b + 1)
                for t in range(4):
                    X = raw + 8 * b + t; Y = X + 4
                    A(f'v_perm_b32 v{FB+8*t+b}, v{Y}, v{X}, s12')
                    A(f'v_perm_b32 v{FB+8*t+4+b}, v{Y}, v{X}, s13')
                    if b == 3 and t >= 1:
                        for n in (2 * t - 2, 2 * t - 1): mfma(OA + 4 * n, S + 12, FB + 4 * n, False)
            for n in (6, 7): mfma(OA + 4 * n, S + 12, FB + 4 * n, False)
    W = 40
    for hq in range(2):
        for n in range(4 * hq, 4 * hq + 4):
            A(f'v_add_f32 v{W+n}, v{OA+4*n}, v{OA+4*n+1}')
            A(f'v_add_f32 v{W+8+n}, v{OA+4*n+2}, v{OA+4*n+3}')
        A(f'ds_write_b128 v{4+hq}, {v(W+4*hq,4)} offset:{256*hq}')
        A(f'ds_write_b128 v{4+hq}, {v(W+8+4*hq,4)} offset:{512+256*hq}')
    A('s_waitcnt lgkmcnt(0)')
    stamp(4)
    A('s_barrier')
    if PLD == 0:
        A('s_and_b32 s4, s2, 7\ns_cmp_ge_u32 s4, 2\ns_cbranch_scc1 L_s9')
        A('s_cmp_ge_u32 s6, 3\ns_cbranch_scc1 L_s9')
        A('s_load_dword s60, s[42:43], 0')
        srd(44, 42, WS_USED)
        A(f'v_mov_b32 v3, 0xff\ns_mul_i32 s4, s6, 7168\ns_min_u32 s4, s4, {NB*1024-7168}\nv_add_u32 v4, s4, v2\nv_add_u32 v6, {TB}, v4')
        A('s_waitcnt lgkmcnt(0)')
        tags()
        gather(104, 7, 6, [1024 * i for i in range(7)], 5)
        for i in range(7): A(f'ds_write_b128 v4, {v(104+4*i,4)} offset:{LT+1024*i}')
        lds_inc(C_PL, 8)
    A.label('L_s9')
    stamp_flush(8)
    A('s_endpgm')

    A.label('L_ctrl')
    A('s_setprio 3')
    A('v_mov_b32 v3, 0xff')
    HI = (4, 2); LOf = (0, 4)
    CF = 4; PTc = 24; GR = 104; BF = 136; AC2 = 104
    def silu(src, n, dst, tmp):
        A(f's_mov_b32 s4, {hx(f2u(-LOG2E))}')
        m = 2 * n
        for r in range(n): A(f'v_lshlrev_b32 v{tmp+m+2*r}, 16, v{src+r}\nv_and_b32 v{tmp+m+2*r+1}, 0xffff0000, v{src+r}')
        for r in range(m): A(f'v_mul_f32 v{tmp+r}, s4, v{tmp+m+r}')
        for r in range(m): A(f'v_exp_f32 v{tmp+r}, v{tmp+r}')
        for r in range(m): A(f'v_add_f32 v{tmp+r}, 1.0, v{tmp+r}')
        for r in range(m): A(f'v_rcp_f32 v{tmp+r}, v{tmp+r}')
        for r in range(m): A(f'v_mul_f32 v{tmp+r}, v{tmp+r}, v{tmp+m+r}')
        for r in range(n): A(f'v_cvt_pk_bf16_f32 v{dst+r}, v{tmp+2*r}, v{tmp+2*r+1}')
    def tile_mfma(raw, a, AC, first):
        for t in range(4):
            f0 = PTc + 8 * (t & 1); f1 = f0 + 4
            perm_pair(f0, f1, raw, t)
            mfma(AC + 8 * t, a, f0, first)
            mfma(AC + 8 * t + 4, a, f1, first)
    def sigma(a):
        rnd2(a, a + 1, a + 2)
        A(f'v_add_f32 v{a+1}, {hx(f2u(1e-5))}, v{a+1}')
        rnd1(a + 1)
        A(f'v_sqrt_f32 v{a+1}, v{a+1}')
        rnd1(a + 1)
        A(f'v_rcp_f32 v{a+1}, v{a+1}')
    def sumn(dst, n, src=GR):
        for k in range(4): A(f'v_add_f32 v{dst+k}, v{src+k}, v{src+4+k}')
        for i in range(2, n):
            for k in range(4): A(f'v_add_f32 v{dst+k}, v{dst+k}, v{src+4*i+k}')
    def afrag(lo2):
        for k in range(4): A(f'v_mov_b32_dpp v{4+k}, v{lo2+(k&1)} quad_perm:{"[0,0,2,2]" if k < 2 else "[1,1,3,3]"} {MK}')
    def red4_publish(vaddr, lr, rnd=True, fl='sc1'):
        for i in range(4): A(f'ds_read_b128 {v(GR+4*i,4)}, v18 offset:{lr+1024*i}')
        A('s_waitcnt lgkmcnt(0)')
        for k in range(4): A(f'v_add_f32 v{4+k}, v{GR+k}, v{GR+4+k}\nv_add_f32 v{8+k}, v{GR+8+k}, v{GR+12+k}')
        for k in range(4): A(f'v_add_f32 v{4+k}, v{4+k}, v{8+k}')
        embed(8, [4, 5, 6, 7], rnd)
        wsstore(8, vaddr, fl=fl)
    TW = 40; TR = 72; TC = 96; TA = 102; TU = 104; TE = 118
    def tab_load(sidx):
        A(f's_mul_i32 s4, {sidx}, 1792\nv_mul_u32_u24 v4, 28, v0\nv_add_u32 v4, s4, v4')
        if notab & 2: A('v_mov_b32 v4, 0')
        for a_, sp in enumerate(('s[28:29]', 's[30:31]', 's[32:33]')):
            A(f'global_load_dwordx4 {v(TR+8*a_,4)}, v4, {sp}')
            A(f'global_load_dwordx3 {v(TR+8*a_+4,3)}, v4, {sp} offset:16')
    def tab_unpack():
        A('s_waitcnt vmcnt(0)')
        for a in range(3):
            for i in range(7):
                d = TW + 14 * a + 2 * i
                A(f'v_lshlrev_b32 v{d}, 16, v{TR+8*a+i}\nv_and_b32 v{d+1}, 0xffff0000, v{TR+8*a+i}')
        for i in range(7):
            A(f'v_pk_mul_f32 {v(TW+42+2*i,2)}, {v(TW+14+2*i,2)}, {v(TW+28+2*i,2)}')
            A(f'v_pk_mul_f32 {v(TW+28+2*i,2)}, {v(TW+2*i,2)}, {v(TW+28+2*i,2)}')
    ca = -2.0 * 0.7978845608028654 * LOG2E
    def tab_consts():
        A(f'v_mov_b32 v{TC}, {hx(f2u(ca))}\nv_mov_b32 v{TC+1}, {hx(f2u(ca))}')
        A(f'v_mov_b32 v{TC+2}, {hx(f2u(ca*0.044715))}\nv_mov_b32 v{TC+3}, {hx(f2u(ca*0.044715))}')
        A(f'v_mov_b32 v{TC+4}, 1.0\nv_mov_b32 v{TC+5}, 1.0')
    def tab_eval():
        P = lambda r: v(r, 2)
        for i in range(7): A(f'v_pk_fma_f32 {P(TU+2*i)}, {P(TW+2*i)}, s[64:65], {P(TW+14+2*i)}')
        for i in range(7): A(f'v_pk_mul_f32 {P(TE+2*i)}, {P(TU+2*i)}, {P(TU+2*i)}')
        for i in range(7): A(f'v_pk_fma_f32 {P(TE+2*i)}, {P(TE+2*i)}, {P(TC+2)}, {P(TC)}')
        for i in range(7): A(f'v_pk_mul_f32 {P(TE+2*i)}, {P(TE+2*i)}, {P(TU+2*i)}')
        for i in range(14): A(f'v_exp_f32 v{TE+i}, v{TE+i}')
        for i in range(7): A(f'v_pk_fma_f32 {P(TU+2*i)}, {P(TW+28+2*i)}, s[64:65], {P(TW+42+2*i)}')
        for i in range(7): A(f'v_pk_add_f32 {P(TE+2*i)}, {P(TE+2*i)}, {P(TC+4)}')
        for i in range(14): A(f'v_rcp_f32 v{TE+i}, v{TE+i}')
        A(f'v_pk_mul_f32 {P(TA)}, {P(TU)}, {P(TE)}')
        for i in range(1, 7): A(f'v_pk_fma_f32 {P(TA)}, {P(TU+2*i)}, {P(TE+2*i)}, {P(TA)}')
        A(f'v_add_f32 v{TA}, v{TA}, v{TA+1}')
    def tab_to(n, until=C_NV, rel=False):
        if rel: A(f's_add_u32 s5, s66, {n}\ns_min_u32 s5, s5, {NB}')
        else: A(f's_mov_b32 s5, {n}')
        A(f's_mov_b32 s63, {until}')
        A('s_call_b64 s[68:69], L_tab')
    def pack_afrag(r):
        A(f'v_perm_b32 v12, v{r+1}, v{r}, s13\nv_perm_b32 v13, v{r+3}, v{r+2}, s13')
        afrag(12)
    def embed_bf(dst, srcs):
        for k, s_ in enumerate(srcs): A(f'v_or_b32 v{dst+k}, s{56+k}, v{s_}')
    CG = ('s2', 0, 4); RG = ('s2', 4, 4)
    addr(12, [HI + (8 * 12288,), LOf + (16,)], [T_(RG, 64 * 12288), T_(CG, 256)], tmp=15)
    addr(13, [(2, 1, 2048), HI + (16,)], [T_(RG, 128)], tmp=15)
    A(f'v_mov_b32 v14, 0\nv_lshlrev_b32 v15, 2, v0\ns_mov_b64 exec, 0xffff\nds_write_b32 v15, v14 offset:{LCNT}\ns_mov_b64 exec, -1')
    addr(14, [HI + (8 * 8192,), LOf + (16,)], [('s2', 5, 3, 128 * 8192), T_(CW, 32 * 8192), T_(G_, 1024), ('s2', 3, 2, 256)], tmp=16)
    RG8 = ('s2', 4, 3); CT_ = ('s2', 7, 1)
    addr(17, [HI + (8 * 12288,), LOf + (16,)], [T_(RG8, 128 * 12288), T_(CW, 32 * 12288), T_(CT_, 4096), T_(CG, 256)], 4096, tmp=16)
    A('v_lshlrev_b32 v18, 4, v0')
    A('s_cmp_lt_u32 s2, 64\ns_cselect_b32 s67, s3, 0')
    A('s_waitcnt lgkmcnt(0)')
    if stamps: A(f's_mov_b32 s{SB}, s70')
    srd(48, 38, 12 << 20)
    A('s_cmp_lg_u32 s3, 0\ns_cbranch_scc1 L_c0')
    A(f'global_load_dwordx4 {v(CF,4)}, v13, s[36:37]')
    A(f'global_load_dwordx4 {v(CF+4,4)}, v13, s[36:37] offset:64')
    tile_loads(40, 12, 's[48:51]', 12288, 0)
    tile_loads(136, 12, 's[48:51]', 12288, 32)
    A.label('L_c0')
    XR = 40
    RB = ('s2', 3, 1); RD = ('s2', 4, 2)
    A('s_cmp_lg_u32 s67, 1\ns_cbranch_scc1 L_c1')
    addr(15, [(0, 6, 16)], [T_(RB, 2048)])
    for i in range(2): A(f'global_load_dwordx4 {v(XR+4*i,4)}, v15, s[16:17] offset:{1024*i}')
    addr(15, [(0, 3, 8)], [T_(RB, 2048), T_(G_, 256), T_(RD, 64)], tmp=16)
    A(f'global_load_dwordx2 {v(XR+8,2)}, v15, s[16:17]')
    A.label('L_c1')
    if B0p == 0: A('s_barrier')
    A('s_load_dword s60, s[42:43], 0')
    srd(52, 22, 8 << 20)
    tile_loads(GR, 17, 's[48:51]', 12288)
    if B0p == 1: A('s_barrier')
    A('s_cmp_eq_u32 s3, 0\ns_cbranch_scc1 L_c1b')
    tile_loads(BF, 14, 's[52:55]', 8192)
    A.label('L_c1b')
    if B0p == 2: A('s_barrier')
    A('s_mov_b32 s14, 0\ns_mov_b32 s15, -1')
    srd(44, 42, WS_USED)
    addr(16, [(4, 1, 512), LOf + (32,), (5, 1, 16)], [T_(CW, 1024)], tmp=15)
    A('s_lshl_b32 s4, s3, 10\nv_add_u32 v19, s4, v18')
    A(f's_and_b32 s4, s2, 127\ns_mul_i32 s4, s4, {NB}\ns_add_u32 s4, s4, {E0*128}\ns_lshl_b32 s4, s4, 16\ns_lshr_b32 s5, s2, 7\ns_lshl_b32 s5, s5, 31\ns_or_b32 s64, s4, s5')
    A('s_lshl_b32 s6, s3, 4\ns_mov_b32 s66, 0')
    A('s_waitcnt lgkmcnt(0)')
    tags()
    A('s_cmp_lg_u32 s3, 0\ns_cbranch_scc1 L_c2')
    A('s_waitcnt vmcnt(24)')
    silu(CF, 8, CF, 72)
    sexpr('s4', [T_(CG, 16 * SL), T_(RG, SL)], MODP)
    A('v_add_u32 v12, s4, v18')
    A('s_waitcnt vmcnt(16)')
    tile_mfma(40, CF, 72, True)
    A('s_waitcnt vmcnt(8)')
    tile_mfma(136, CF + 4, 72, False)
    select_out(PTc, 72)
    embed(PTc + 4, range(PTc, PTc + 4))
    wsstore(PTc + 4, 12, fl=LOC)
    tile_loads(BF, 14, 's[52:55]', 8192)
    A.label('L_c2')
    stamp(1)
    addr(13, [(2, 1, 2048), HI + (16,)], [T_(RG8, 256), T_(CW, 64)], tmp=15)
    A('global_load_dwordx4 v[96:99], v13, s[36:37]')
    tab_load('s3')
    A('s_cmp_lg_u32 s67, 1\ns_cbranch_scc1 L_c2b')
    A('s_waitcnt vmcnt(23)')
    XU = 52; LN = 20
    for r in range(8): A(f'v_lshlrev_b32 v{XU+2*r}, 16, v{XR+r}\nv_and_b32 v{XU+2*r+1}, 0xffff0000, v{XR+r}')
    st6 = [X1_, X2_, HM, RM, 'p16', 'p32']
    A(f'v_add_f32 v4, v{XU}, v{XU+1}')
    for i in range(2, 16): A(f'v_add_f32 v4, v4, v{XU+i}')
    red('v_add_f32', [4], st6, [6])
    A(f'v_mul_f32 v4, {hx(f2u(1.0/1024))}, v4')
    A(f'v_sub_f32 v6, v{XU}, v4\nv_mul_f32 v5, v6, v6')
    for i in range(1, 16): A(f'v_sub_f32 v{6+(i&1)}, v{XU+i}, v4\nv_fmac_f32 v5, v{6+(i&1)}, v{6+(i&1)}')
    red('v_add_f32', [5], st6, [6])
    A(f'v_mul_f32 v5, {hx(f2u(1.0/1024))}, v5')
    sigma(4)
    A(f'v_lshlrev_b32 v20, 16, v{XR+8}\nv_and_b32 v21, 0xffff0000, v{XR+8}\nv_lshlrev_b32 v22, 16, v{XR+9}\nv_and_b32 v23, 0xffff0000, v{XR+9}')
    for k in range(4): A(f'v_sub_f32 v{LN+k}, v{LN+k}, v4')
    rnd2(LN, LN + 1, 6); rnd2(LN + 2, LN + 3, 7)
    for k in range(4): A(f'v_mul_f32 v{LN+k}, v{LN+k}, v5')
    rnd2(LN, LN + 1, 6); rnd2(LN + 2, LN + 3, 7)
    A.label('L_c2b')
    A('s_waitcnt vmcnt(6)')
    silu(96, 4, CF, 40)
    tile_mfma(GR, CF, 40, True)
    select_out(8, 40)
    A(f'ds_write_b128 v16, v[8:11] offset:{LRED2}')
    tab_unpack(); tab_consts()
    A('s_cmp_lg_u32 s67, 1\ns_cbranch_scc1 L_c2d')
    addr(4, [(5, 1, 128 * SL), (3, 2, SL), (0, 1, 512), (1, 2, 16)], [T_(G_, 16 * SL), T_(RB, 256), T_(RD, 64)], MODP, tmp=5)
    if r1st == 1: stamp(7)
    gather(GR, 4, 4, [4 * SL * i for i in range(4)], 5, kind=1, net=True)
    if r1st == 1: stamp(8)
    sumn(4, 4)
    red('v_add_f32', [4, 5, 6, 7], [R8, 'p16'], [8, 9, 10, 11])
    rnd2(4, 5, 8); rnd2(6, 7, 9)
    for k in range(4): A(f'v_mov_b32 v{8+k}, v{4+k}')
    for k in range(4): A(f'v_permlane32_swap_b32 v{4+k}, v{8+k}')
    for k in range(4): A(f'v_add_f32 v{8+k}, 1.0, v{8+k}')
    rnd2(8, 9, 13); rnd2(10, 11, 14)
    for k in range(4): A(f'v_mul_f32 v{8+k}, v{8+k}, v{LN+k}')
    rnd2(8, 9, 13); rnd2(10, 11, 14)
    for k in range(4): A(f'v_add_f32 v{8+k}, v{4+k}, v{8+k}')
    rnd2(8, 9, 13); rnd2(10, 11, 14)
    embed_bf(8, [8, 9, 10, 11])
    addr(4, [(0, 6, 16)], [T_(G_, 1024), T_(RB, 512), T_(RD, 128)], HR)
    A('s_mov_b64 exec, 0xff')
    wsstore(8, 4)
    A('s_mov_b64 exec, -1')
    A.label('L_c2d')
    tab_to(NB, C_T1)
    addr(4, [(2, 1, 512), HI + (32,), (0, 1, 16)], [('s2', 5, 3, 1024), T_(CW, 128)], HR, tmp=5)
    if TH_ < 99: lds_spin(C_T1, TGC, 6, sleep=2)
    stamp(2)
    gather(GR, 1, 4, [0], 5, kind=1, net=True)
    stamp(3)
    pack_afrag(GR)
    tile_mfma(BF, 4, AC2, True)
    sexpr('s4', [('s2', 0, 8, SL)], QP)
    A('v_add_u32 v14, s4, v18')
    select_out(8, AC2)
    A(f'ds_write_b128 v16, v[8:11] offset:{LRED}')
    lds_inc(C_P2, 12, rtn=True)
    A('s_cmp_lg_u32 s4, 3\ns_cbranch_scc1 L_c3')
    red4_publish(14, LRED, fl=LOC)
    A.label('L_c3')
    stamp(4)
    tab_to(N2, rel=True)
    def line_reduce_store(vgaddr, offs, base, fl, GR=GR, **kw):
        n = len(offs)
        gather(GR, n, vgaddr, offs, 5, **kw)
        if n > 1 and r1st == 3:
            stamp(7)
            A(f's_sub_u32 s4, {POLL_LIMIT}, s10\ns_mul_i32 s4, s4, 100\ns_add_u32 s{SB+8}, s{SB+9}, s4')
        if n > 1: sumn(GR, n, GR)
        red('v_add_f32', [GR, GR + 1, GR + 2, GR + 3], [R8, 'p16', 'p32'], [8, 9, 10, 11])
        rnd2(GR, GR + 1, 8); rnd2(GR + 2, GR + 3, 9)
        embed_bf(8, [GR, GR + 1, GR + 2, GR + 3])
        A(f's_mov_b32 s7, {base}\ns_mov_b64 exec, 0xff')
        wsstore(8, 17, 's7', fl)
        A('s_mov_b64 exec, -1')
    addr(17, [(0, 6, 16)], [('s2', 7, 1, 16384), T_(G_, 2048), ('s2', 3, 4, 128)])
    A('s_cmp_lg_u32 s3, 2\ns_cbranch_scc1 L_r2')
    addr(4, [(3, 3, 32 * SL), (0, 3, 16)], [T_(G_, SL), ('s2', 5, 2, 8 * SL), ('s2', 7, 1, 512), ('s2', 3, 2, 128)], QP, tmp=5)
    line_reduce_store(4, [0], Q2, 'sc1', kind=1, net=True)
    A.label('L_r2')
    tab_to(NB, C_T2)
    if TQ < 99: lds_spin(C_T2, TGC, 6, sleep=2)
    sexpr('s4', [T_(G_, 4096)], Q2)
    A('v_add_u32 v4, s4, v19')
    stamp(5)
    gather(GR, 1, 4, [0], 5, kind=1, net=True)
    A(f'v_perm_b32 v4, v{GR+1}, v{GR}, s13\nv_perm_b32 v5, v{GR+3}, v{GR+2}, s13')
    A('v_lshrrev_b32 v6, 1, v19')
    A(f'ds_write_b64 v6, v[4:5] offset:{LQ}')
    lds_inc(C_Q, 8)
    stamp(6)
    tab_to(NB)
    lds_inc(C_TB, 4, rtn=True)
    A('s_cmp_lg_u32 s4, 3\ns_cbranch_scc1 L_c3d')
    A(f's_mov_b64 exec, {(1 << (NB//4)) - 1}')
    A('v_lshlrev_b32 v4, 8, v0')
    for i in range(16): A(f'ds_read_b128 {v(40+4*i,4)}, v4 offset:{LTP+16*i}')
    A(f's_mul_i32 s4, s2, {NB*4}\ns_add_u32 s4, s4, {TB}\nv_add_u32 v12, s4, v18')
    A('s_waitcnt lgkmcnt(0)')
    for k in range(4):
        A(f'v_add_f32 v{4+k}, v{40+16*k}, v{41+16*k}')
        for i in range(2, 16): A(f'v_add_f32 v{4+k}, v{4+k}, v{40+16*k+i}')
    embed(8, [4, 5, 6, 7])
    wsstore(8, 12)
    A('s_mov_b64 exec, -1')
    A.label('L_c3d')
    if not r1st: stamp(7)
    W2R = 40; BF = 72; AC2 = 40
    if cpf:
        A('s_cmp_lg_u32 s3, 2\ns_cbranch_scc1 L_cpf')
        A('s_getpc_b64 s[8:9]')
        A.label('L_pc')
        A(f's_lshr_b32 s4, s2, 3\ns_and_b32 s4, s4, 15\ns_lshl_b32 s4, s4, 10\ns_min_u32 s4, s4, L_codeend-L_pc-1024\nv_add_u32 v4, s4, v18')
        A('global_load_dwordx4 v[144:147], v4, s[8:9]')
        A.label('L_cpf')
    HH = lambda m: [T_(G_, 4 * m), ('s2', 3, 2, m)]
    CC = ('s2', 5, 3); GG = ('s2', 1, 2)
    HL = lambda m: [('s2', 0, 1, 4 * m), ('s2', 3, 2, m)]
    B_ = ('s2', 0, 1)
    srd(52, 24, 8 << 20)
    addr(33, [HI + (8 * 2048,), LOf + (16,)], HH(128 * 2048) + [T_(CW, 32 * 2048), T_(CC, 256)], tmp=4)
    addr(27, [(0, 6, 16)], [T_(G_, 32 * SL), T_(C_, SL), T_(CW, 1024)], OP, tmp=4)
    addr(28, [(5, 1, 32)], [T_(CW, 64)], tmp=4)
    addr(31, [(1, 5, SL), (0, 1, 16)], [T_(G_, 32 * SL), T_(C_, 128), T_(CW, 32)], OP, tmp=4)
    addr(29, [(2, 1, 512 * OST), HI + (OST,), (0, 1, 16)], [T_(GG, 128 * OST)] + HL(16 * OST) + [T_(CW, 4 * OST)], O2, tmp=4)
    addr(17, [(0, 3, 16), (5, 1, 8)], [T_(G_, 128 * OST), T_(C_, 4 * OST), T_(CW, OST)], O2, tmp=4)
    sexpr('s4', HH(8 * SL) + [T_(CC, SL)], AP)
    A('v_add_u32 v30, s4, v18')
    sexpr('s4', [T_(CT_, 128 * SL), T_(CG, 8 * SL), T_(RG8, SL)], MODR)
    A('v_add_u32 v32, s4, v18')
    addr(36, [(0, 3, 8), (4, 1, 4), (5, 1, 2)], [T_(B_, 2048), T_(C_, 64)], tmp=4)
    addr(26, [(5, 1, 16), (0, 2, 32)], [T_(B_, 4096), T_(C_, 128)], tmp=4)
    addr(37, [(5, 1, 16), (0, 5, 128)], [T_(B_, 4096)], tmp=4)
    addr(38, [(3, 3, 8 * SL), (0, 3, 16)], [T_(CC, SL), T_(B_, 512), ('s2', 3, 2, 128)], AP, tmp=4)
    addr(34, [(3, 3, SL), (0, 3, 16)], [T_(CC, 8 * SL), T_(B_, 512), ('s2', 3, 2, 128)], MODR, tmp=4)
    GA = 20; SBr = 21; Ur = 22; GB = 23; XO = 24; B2r = 25; CU = 48
    A('s_cmp_lg_u32 s3, 1\ns_cbranch_scc1 L_c4')
    A(f'global_load_ushort v{XO}, v36, s[16:17]')
    A(f'v_mov_b32 v7, 0\nglobal_load_ushort v{B2r}, v7, s[34:35]')
    A.label('L_c4')
    def sums_publish(r, base):
        tred(32, [(r, r + 3), (r + 1, r + 4), (r + 2, r + 5)])
        A(f'v_mov_b32 v{r+3}, s60')
        red('v_add_f32', [r, r + 1, r + 2], [X1_, X2_, HM])
        for j in range(3): A(f'v_add_f32_dpp v{r+j}, v{r+j}, v{r+j} row_bcast:15 row_mask:0xa bank_mask:0xf')
        A(f's_mov_b32 s7, {base}\ns_mov_b32 exec_lo, 0xf0000\ns_mov_b32 exec_hi, 0xf0000')
        locstore(r, 26, 's7')
        A('s_mov_b64 exec, -1')
    A('s_cmp_lg_u32 s3, 3\ns_cbranch_scc1 L_c5')
    lds_spin(C_ST, 8, 4, sleep=4)
    A(f'v_lshlrev_b32 v4, 3, v0\nds_read_b64 v[8:9], v4 offset:{LST}')
    A(f's_mov_b32 s7, {hx(f2u(LOG2E))}')
    A('s_waitcnt lgkmcnt(0)')
    A('v_mov_b32 v4, v8\nv_mov_b32 v39, v8')
    red('v_max_f32', [4], [R8, 'p16', 'p32'], [6])
    A('v_sub_f32 v5, v8, v4\nv_mul_f32 v5, s7, v5\nv_exp_f32 v5, v5\nv_mul_f32 v5, v5, v9')
    red('v_add_f32', [5], [R8, 'p16', 'p32'], [6])
    A('s_getreg_b32 s67, hwreg(HW_REG_XCC_ID, 0, 4)')
    A(f'v_mov_b32 v6, s67\nv_mov_b32 v7, s60')
    addr(12, [(0, 6, 16)], [T_(G_, 4096), T_(C_, 128)], ST)
    A('s_mov_b64 exec, 0xff')
    wsstore(4, 12, fl=LOC)
    A('s_mov_b64 exec, -1')
    addr(12, [(0, 6, 16)], [T_(G_, 4096)], ST)
    lds_spin(C_V, 8, 8, sleep=4)
    gather(GR, 4, 12, [1024 * i for i in range(4)], 8, full=True, net=True)
    for i in range(4): A(f'v_xor_b32 v{GR+4*i+2}, s67, v{GR+4*i+2}')
    A(f'v_or3_b32 v4, v{GR+2}, v{GR+6}, v{GR+10}\nv_or_b32 v4, v4, v{GR+14}\nv_cmp_ne_u32 vcc, 0, v4')
    A('s_or_b32 s4, vcc_lo, vcc_hi\nv_mov_b32 v4, s4\nv_mov_b32 v5, 0')
    A(f'ds_write_b32 v5, v4 offset:{C_H}')
    A(f'v_max3_f32 v4, v{GR}, v{GR+4}, v{GR+8}\nv_max_f32 v4, v4, v{GR+12}')
    red('v_max_f32', [4], [R8, 'p16', 'p32'], [6])
    for i in range(4): A(f'v_sub_f32 v{8+i}, v{GR+4*i}, v4')
    for i in range(4): A(f'v_mul_f32 v{8+i}, s7, v{8+i}')
    for i in range(4): A(f'v_exp_f32 v{8+i}, v{8+i}')
    A(f'v_mul_f32 v5, v8, v{GR+1}')
    for i in range(1, 4): A(f'v_fmac_f32 v5, v{8+i}, v{GR+4*i+1}')
    red('v_add_f32', [5], [R8, 'p16', 'p32'], [6])
    A('v_rcp_f32 v5, v5\nv_sub_f32 v6, v39, v4\nv_mul_f32 v6, s7, v6\nv_exp_f32 v6, v6\nv_mul_f32 v6, v6, v5')
    addr(7, [(0, 3, 32), (3, 3, 4)], tmp=8)
    A(f'ds_write_b32 v7, v6 offset:{LF}')
    lds_inc(C_F, 8)
    A.label('L_c5')
    def preload(n, lab):
        A(f's_and_b32 s4, s2, 7\ns_cmp_ge_u32 s4, 2\ns_cbranch_scc1 {lab}')
        A(f's_sub_u32 s4, s3, 1\ns_cmp_lt_u32 s4, 2\ns_cbranch_scc1 {lab}')
        A(f's_and_b32 s4, s3, 1\ns_mul_i32 s4, s4, {NB*512}\nv_add_u32 v4, s4, v18\nv_add_u32 v6, {TB}, v4')
        spin(GR, 6, [1024 * i for i in range(NB // 2)], 5)
        for i in range(NB // 2): A(f'ds_write_b128 v4, {v(GR+4*i,4)} offset:{LT+1024*i}')
        lds_inc(C_PL, 8); lds_inc(C_PL, 8)
        A.label(lab)
    if PLD == 2:
        lds_spin(C_V, 8, 4, sleep=4)
        preload(2, 'L_pl2')
    if not r1st: stamp(8)
    lds_spin(C_XS, 8, 4, sleep=2)
    if PT1 == 1: A('s_cmp_lg_u32 s3, 2\ns_cbranch_scc1 L_pre1')
    if PT1 < 2: wsload(136, 31, 0)
    if PT1 >= 5:
        m_ = {5: 0x01010101, 6: 0x00010001, 7: 0x11111111}[PT1]
        A(f's_cmp_lg_u32 s3, 2\ns_cbranch_scc1 L_pre1\ns_mov_b32 exec_lo, {m_}\ns_mov_b32 exec_hi, {m_ | 0x40000000}')
        wsload(136, 31, 0)
        A('s_mov_b64 exec, -1')
    if PT1 in (3, 4): A(f'buffer_load_dwordx4 v[136:139], v27, s[44:47], 0 offen {"nt" if PT1 == 3 else "sc1"}')
    A.label('L_pre1')
    A('s_cmp_lg_u32 s3, 1\ns_cbranch_scc1 L_pre2')
    A('s_and_b32 s4, s2, 7\ns_cmp_ge_u32 s4, 2\ns_cbranch_scc1 L_pre2')
    wsload(140, 37, XS); wsload(144, 37, CS)
    A.label('L_pre2')
    def mr_pub():
        A('s_cmp_lg_u32 s3, 0\ns_cbranch_scc1 L_pre3')
        lds_spin(C_TB, 4, 4)
        red4_publish(32, LRED2, False)
        A.label('L_pre3')
    if MRP == 0: mr_pub()
    if O1:
        addr(39, [(0, 1, 16), (5, 1, 8)], [T_(CW, 32)], tmp=4)
        addr(17, [(0, 6, 16)], [T_(G_, 4096), T_(C_, 128)], O2)
    lds_spin(C_WO, WOC, 4, sleep=2)
    tile_loads(W2R, 33, 's[52:55]', 2048)
    if MRP == 1: mr_pub()
    addr(2, [(5, 1, 512), (1, 4, 16)], [T_(CW, 1024)], LV, tmp=1)
    A(f'v_and_b32 v1, 1, v0\nv_mul_u32_u24 v1, 384, v1\nv_xor_b32 v2, v2, v1\nv_add_u32 v1, {4*NL*1024}, v2')
    lds_spin(C_F, 1, 12)
    A(f'ds_read_b32 v35, v13 offset:{C_H}')
    A(f'ds_read_b128 v[4:7], v28 offset:{LF}\nds_read_b128 v[8:11], v28 offset:{LF+16}')
    A('s_waitcnt lgkmcnt(0)\nv_readfirstlane_b32 s67, v35')
    A('s_barrier')
    stamp(9)
    for w in range(8): A(f'ds_read_b128 {v(GR+4*w,4)}, v{2 if w < 4 else 1} offset:{NL*1024*(w%4)}')
    for w in range(8):
        A(f's_waitcnt lgkmcnt({7-w})')
        sel = 'op_sel:[0,1,0] op_sel_hi:[1,1,1]' if w & 1 else 'op_sel:[0,0,0] op_sel_hi:[1,0,1]'
        for k in (0, 2):
            if w == 0: A(f'v_pk_mul_f32 {v(12+k,2)}, {v(GR+k,2)}, v[4:5] op_sel_hi:[1,0]')
            else: A(f'v_pk_fma_f32 {v(12+k,2)}, {v(GR+4*w+k,2)}, {v(4+(w&~1),2)}, {v(12+k,2)} {sel}')
    embed(4, [12, 13, 14, 15], False)
    locstore(4, 27)
    A('v_mov_b32 v9, s60\nv_mov_b32 v10, 0\nv_mov_b32 v11, 1')
    spin(136, 31, [0], 12, net=True, sleep=OS)
    if r1st == 3: stamp(7)
    tred(32, [(136, 138), (137, 139)])
    tred(16, [(136, 137)])
    red('v_add_f32', [136], ['row_ror:2', 'row_ror:4', R8])
    A('v_mov_b32 v137, v136\nv_permlane16_swap_b32 v136, v137\nv_cvt_pk_bf16_f32 v8, v136, v137')
    A(f's_mov_b32 exec_lo, {255 if O2F else 3}\ns_mov_b32 exec_hi, {255 if O2F else 3}')
    if O1:
        A(f'ds_write_b64 v39, v[8:9] offset:{LXS}\ns_mov_b64 exec, 1\nds_add_rtn_u32 v11, v10, v11 offset:{C_O}\ns_mov_b64 exec, 0xff')
        A(f'ds_read_b128 v[4:7], v18 offset:{LXS}\ns_waitcnt lgkmcnt(0)\nv_readfirstlane_b32 s4, v11\ns_cmp_lg_u32 s4, 3\ns_cbranch_scc1 L_o1')
        A('buffer_store_dwordx4 v[4:7], v17, s[44:47], 0 offen sc1')
        A.label('L_o1')
    elif not abl & 32: A('buffer_store_dwordx2 v[8:9], v17, s[44:47], 0 offen sc1')
    A('s_mov_b64 exec, -1')
    stamp(10)
    if MRP == 2: mr_pub()
    perm_all(BF, W2R)
    spin(GR, 29, [0], 12, full=2, sleep=GS)
    stamp(11)
    for k in range(4): A(f'v_mov_b32_dpp v{4+k}, v{GR+2*(k&1)} quad_perm:{"[0,0,2,2]" if k < 2 else "[1,1,3,3]"} {MK}')
    for n in range(8): mfma(AC2 + 4 * n, 4, BF + 4 * n, True)
    select_out(8, AC2)
    A(f'ds_write_b128 v16, v[8:11] offset:{LRED}')
    A('s_waitcnt lgkmcnt(0)')
    A('s_barrier')
    A('s_cmp_lg_u32 s3, 0\ns_cbranch_scc1 L_c6')
    red4_publish(30, LRED, False)
    A.label('L_c6')
    if PLD == 1: preload(2, 'L_pl1')
    A('s_and_b32 s4, s2, 7\ns_cmp_ge_u32 s4, 2\ns_cbranch_scc1 L_c7')
    A('s_cmp_eq_u32 s3, 1\ns_cbranch_scc1 L_fin')
    A('s_cmp_lg_u32 s3, 2\ns_cbranch_scc1 L_c7')
    def sums_get(base, d0, mid=None):
        spin(GR, 37, [base], 12, full=1, mid=mid)
        red('v_add_f32', [GR, GR + 1, GR + 2], [X1_, X2_, HM, RM, 'p16'], [GR + 4, GR + 5, GR + 6])
        for j in range(3): A(f'v_mul_f32 v{d0+j}, {hx(f2u(1.0/1024))}, v{GR+j}\nv_mul_f32 v{d0+3+j}, {hx(f2u(1.0/1024))}, v{GR+j}')
        for j in range(3): A(f'v_permlane32_swap_b32 v{d0+j}, v{d0+3+j}')
    spin(GR, 34, [m * 64 * SL for m in range(4)], 5)
    tred(32, [(GR + 4 * m + 2 * j, GR + 4 * m + 2 * j + 1) for m in range(4) for j in range(2)])
    tred(16, [(GR + 4 * m, GR + 4 * m + 2) for m in range(4)])
    for m in range(4): A(f'v_add_f32_dpp v{GA+m}, v{GR+4*m}, v{GR+4*m} {R8} {MK}')
    rnd2(GA, SBr, 4); rnd2(Ur, GB, 5)
    A(f'v_add_f32 v{Ur}, 1.0, v{Ur}'); rnd1(Ur)
    A(f'ds_write_b128 v18, {v(GA,4)} offset:{LRED2}')
    lds_inc(C_MR, 12)
    A(f'v_mov_b32 v4, v{Ur}\nv_mul_f32 v5, v{Ur}, v{Ur}\nv_mul_f32 v6, v{Ur}, v{SBr}\nv_mov_b32 v7, v{SBr}\nv_mul_f32 v8, v{SBr}, v{SBr}\nv_mov_b32 v9, 0')
    sums_publish(4, CS)
    sums_get(CS, CU)
    A(f'v_mov_b32 v4, 0\ns_mov_b64 exec, 1\nds_write_b128 v4, {v(CU,4)} offset:{LRED2+1024}\nds_write_b32 v4, v{CU+4} offset:{LRED2+1040}\ns_mov_b64 exec, -1')
    lds_spin(C_PL, 3, 12)
    lds_inc(C_MR, 12)
    A.label('L_c7')
    stamp(12)
    stamp_flush(13)
    A('s_endpgm')
    A.label('L_fin')
    A(f'v_lshlrev_b32 v{XO}, 16, v{XO}\nv_lshlrev_b32 v{B2r}, 16, v{B2r}')
    lds_spin(C_MR, 1, 12, sleep=0)
    A(f'ds_read_b128 {v(GA,4)}, v18 offset:{LRED2}')
    spin(GR, 38, [64 * SL * i for i in range(4)], 12)
    stamp(12)
    for k in range(4): A(f'v_add_f32 v{4+k}, v{GR+k}, v{GR+4+k}\nv_add_f32 v{8+k}, v{GR+8+k}, v{GR+12+k}')
    for k in range(4): A(f'v_add_f32 v{4+k}, v{4+k}, v{8+k}')
    tred(32, [(4, 5), (6, 7)]); tred(16, [(4, 6)]); red('v_add_f32', [4], [R8])
    if FS: A(f's_waitcnt lgkmcnt(0)\nv_fmac_f32 v{XO}, v4, v{GA}')
    else:
        rnd1(4)
        A(f's_waitcnt lgkmcnt(0)\nv_mul_f32 v4, v4, v{GA}'); rnd1(4)
        A(f'v_add_f32 v{XO}, v{XO}, v4'); rnd1(XO)
    A(f'v_mov_b32 v4, v{XO}\nv_mul_f32 v5, v{XO}, v{XO}\nv_mul_f32 v6, v{XO}, v{Ur}\nv_mul_f32 v7, v6, v6\nv_mul_f32 v8, v6, v{Ur}\nv_mul_f32 v9, v6, v{SBr}')
    sums_publish(4, XS)
    def consts():
        lds_spin(C_MR, 2, 12, sleep=0)
        A(f's_mov_b32 s10, {POLL_LIMIT}')
        A(f'ds_read_b128 {v(CU,4)}, v13 offset:{LRED2+1024}\nds_read_b32 v{CU+4}, v13 offset:{LRED2+1040}')
    sums_get(XS, 40, consts)
    A('s_waitcnt lgkmcnt(0)')
    stamp(13)
    if FS:
        A(f'v_fma_f32 v5, -v40, v40, v41\nv_fma_f32 v42, -v40, v{CU}, v42\nv_max_f32 v5, 0, v5\nv_mul_f32 v10, v40, v{CU+1}')
        A(f'v_add_f32 v5, {hx(f2u(1e-5))}, v5\nv_fma_f32 v45, -v40, v{CU+2}, v45\nv_rsq_f32 v5, v5\nv_fma_f32 v10, -2.0, v44, v10')
        A(f'v_sub_f32 v12, v{XO}, v40\nv_fma_f32 v43, v40, v10, v43\nv_add_f32 v45, v45, v45\nv_mul_f32 v12, v12, v{Ur}')
        A(f'v_fma_f32 v8, v5, v42, v{CU+3}\nv_fma_f32 v43, v43, v5, v45\nv_fma_f32 v12, v12, v5, v{SBr}\nv_fma_f32 v9, v43, v5, v{CU+4}')
        A(f'v_fma_f32 v9, -v8, v8, v9\nv_sub_f32 v12, v12, v8\nv_max_f32 v9, 0, v9\nv_add_f32 v9, {hx(f2u(1e-5))}, v9\nv_rsq_f32 v9, v9')
        A(f'v_fmac_f32 v{XO}, v{B2r}, v{GB}')
        A('v_mul_f32 v12, v12, v9'); rnd1(12)
    else:
        A('v_mov_b32 v4, v40\nv_fma_f32 v5, -v40, v40, v41\nv_max_f32 v5, 0, v5')
        sigma(4)
        A(f'v_fma_f32 v42, -v4, v{CU}, v42')
        A(f'v_fma_f32 v45, -v4, v{CU+2}, v45')
        A(f'v_mul_f32 v10, v4, v{CU+1}\nv_fma_f32 v10, -2.0, v44, v10\nv_fma_f32 v43, v4, v10, v43')
        A(f'v_sub_f32 v12, v{XO}, v4'); rnd1(12)
        A(f'v_fma_f32 v8, v5, v42, v{CU+3}')
        A(f'v_mul_f32 v43, v43, v5\nv_fma_f32 v43, 2.0, v45, v43\nv_fma_f32 v9, v43, v5, v{CU+4}')
        A('v_mul_f32 v12, v12, v5'); rnd1(12)
        A('v_fma_f32 v9, -v8, v8, v9\nv_max_f32 v9, 0, v9')
        A(f'v_mul_f32 v12, v12, v{Ur}'); rnd1(12)
        sigma(8)
        A(f'v_add_f32 v12, v12, v{SBr}'); rnd1(12)
        A('v_sub_f32 v12, v12, v8'); rnd1(12)
        A('v_mul_f32 v12, v12, v9'); rnd1(12)
    A(f'v_bfe_u32 v13, v12, 16, 15\nv_subrev_u32 v13, {E0*128}, v13\nv_lshrrev_b32 v14, 31, v12')
    A(f'v_cmp_lt_u32 vcc, {NB*128-1 if not force_fb else 128*17}, v13')
    A(f'v_min_u32 v13, {NB*128-1}, v13\nv_mul_u32_u24 v14, {NB*128}, v14\nv_add_lshl_u32 v13, v13, v14, 2')
    A(f'ds_read_b32 v15, v13 offset:{LT}')
    if not abl: A('s_cbranch_vccnz L_fb0')
    A.label('L_nofb')
    A('s_waitcnt lgkmcnt(0)')
    if FS: A(f'v_fma_f32 v15, v15, v{GB}, v{XO}')
    else:
        rnd1(15)
        A(f'v_add_f32 v15, v15, v{B2r}'); rnd1(15)
        A(f'v_mul_f32 v15, v15, v{GB}'); rnd1(15)
        A(f'v_add_f32 v15, v15, v{XO}')
    A('v_cvt_pk_bf16_f32 v15, v15, v15')
    A('s_mov_b32 exec_lo, 0x00ff00ff\ns_mov_b32 exec_hi, 0x00ff00ff')
    A('global_store_short v36, v15, s[40:41]')
    A('s_cmp_lg_u32 s2, 0\ns_cbranch_scc1 L_f2')
    A('v_mov_b32 v4, 0\nv_mov_b32 v5, s60\ns_mov_b64 exec, 1')
    A('buffer_store_dword v5, v4, s[44:47], 0 offen' + (' sc1' if GSC else ''))
    if enc >= 0:
        if enc == 99: A('s_memrealtime s[74:75]\ns_waitcnt lgkmcnt(0)')
        if enc == 98: A('s_mov_b32 s74, s70')
        A(f's_sub_u32 s5, s74, s70\ns_add_u32 s5, s5, {hold*100}')
        A.label('L_hold')
        A(f's_memrealtime s[72:73]\ns_waitcnt lgkmcnt(0)\ns_sub_u32 s4, s72, s70\ns_cmp_lt_u32 s4, s5\ns_cbranch_scc1 L_hold')
    elif hold:
        A.label('L_hold')
        A(f's_memrealtime s[72:73]\ns_waitcnt lgkmcnt(0)\ns_sub_u32 s4, s72, s70\ns_cmp_lt_u32 s4, {hold*100}\ns_cbranch_scc1 L_hold')
    A.label('L_f2')
    if stamps: A(f's_memrealtime s[70:71]\ns_waitcnt lgkmcnt(0)\ns_mov_b32 s{SB+1}, s70')
    stamp_flush(14)
    A.label('L_end')
    A('s_endpgm')
    for L1, L2, r, vaddr, soff in slow:
        A.label(L1)
        wsstore(r, vaddr, soff)
        A(f's_branch {L2}')
    for X, Y, E, net in cold:
        A.label(X)
        A(f's_cmp_eq_u32 s10, 0\ns_cbranch_scc1 {X}e')
        if net: A('buffer_wbl2 sc1\ns_waitcnt vmcnt(0)\nbuffer_inv sc1\ns_waitcnt vmcnt(0)')
        A(f's_branch {Y}')
        A.label(X + 'e')
        A(f's_waitcnt vmcnt(0)\ns_branch {E}')
    A.label('L_fb0')
    A('s_mov_b64 s[66:67], vcc')
    A('s_waitcnt lgkmcnt(0)')
    tab_consts()
    A.label('L_fb')
    A('s_ff1_i32_b64 s4, s[66:67]')
    A('v_readlane_b32 s64, v12, s4')
    A('s_mov_b32 s6, 0\nv_mov_b32 v13, 0')
    A('s_mov_b32 s65, s64')
    A.label('L_fb2')
    tab_load('s6'); tab_unpack(); tab_eval()
    A(f'v_add_f32 v13, v13, v{TA}')
    A('s_add_u32 s6, s6, 1\ns_cmp_lt_u32 s6, 4\ns_cbranch_scc1 L_fb2')
    red('v_add_f32', [13], [X1_, X2_, HM, RM, 'p16', 'p32'], [14])
    A('v_cmp_eq_u32 vcc, s64, v12')
    A('v_cndmask_b32 v15, v15, v13, vcc')
    A('s_andn2_b64 s[66:67], s[66:67], vcc')
    A('s_cbranch_scc1 L_fb')
    A('s_branch L_nofb')
    A.label('L_tab')
    A('s_cmp_ge_u32 s66, s5\ns_cbranch_scc1 L_tabx')
    A('s_setprio 0')
    A.label('L_tab1')
    A('s_mov_b32 s65, s64\nv_mov_b32 v5, s63\nds_read_b32 v5, v5\ns_waitcnt lgkmcnt(0)\nv_readfirstlane_b32 s4, v5')
    A(f's_cmp_ge_u32 s4, {TGC}\ns_cbranch_scc1 L_tabe')
    if notab & 1: A('s_sleep 9')
    else: tab_eval()
    A('v_lshrrev_b32 v4, 2, v0\nv_add_u32 v4, s6, v4')
    red('v_add_f32', [TA], [X1_, X2_, HM, RM])
    A('s_mov_b32 exec_lo, 0x00010001\ns_mov_b32 exec_hi, 0x00010001')
    A(f'ds_write_b32 v4, v{TA} offset:{LTP}')
    A('s_mov_b64 exec, -1')
    A('s_add_u32 s6, s6, 64\ns_add_u32 s64, s64, 0x10000\ns_add_u32 s66, s66, 1\ns_cmp_lt_u32 s66, s5')
    A('s_cbranch_scc1 L_tab1')
    A.label('L_tabe')
    A('s_setprio 3')
    A.label('L_tabx')
    A('s_setpc_b64 s[68:69]')
    A.label('L_codeend')
    A.raw('.section .rodata,"a"'); A.raw('.p2align 6'); A.raw(f'.amdhsa_kernel {KN}')
    A.raw('  .amdhsa_next_free_vgpr 168'); A.raw('  .amdhsa_next_free_sgpr 102'); A.raw('  .amdhsa_accum_offset 168')
    A.raw('  .amdhsa_group_segment_fixed_size 0'); A.raw('  .amdhsa_kernarg_size 120'); A.raw('  .amdhsa_user_sgpr_count 2')
    A.raw('  .amdhsa_user_sgpr_kernarg_segment_ptr 1'); A.raw('  .amdhsa_system_sgpr_workgroup_id_x 1'); A.raw('.end_amdhsa_kernel')
    return A.text()

if __name__ == '__main__':
    open('k17.s', 'w').write(gen())
    open('k17_st.s', 'w').write(gen(stamps=1))
    open('k17_fb.s', 'w').write(gen(force_fb=1))
```

```python
import sys, struct
from asmlib import Asm
KN = 'adaLN_cond__gqa_block_cached__mixer_token_mlp__decode_kernel'

def f2u(x): return struct.unpack('<I', struct.pack('<f', x))[0]
def hx(x): return '0x%08x' % (x & 0xffffffff)
LOG2E = 1.4426950408889634
STAMP_OFF = 200 << 20
LQ = 0; LST = 2048; LF = 2560; LCNT = 2816; LXS = 2880; LRED = 3072; LTP = 7168; LRED2 = 9216; LT = 13312
C_P2, C_Q, C_ST, C_XS, C_TB, C_WO, C_V, C_PL, C_MR, C_H, C_T1, C_T2, C_O, C_F, C_NV = [LCNT + 4 * i for i in range(15)]
NB = 20; E0 = 111
LV = LT + NB * 1024
POLL_LIMIT = 131072
HEADER = """; adaLN -> GQA decode attention -> out-proj -> adaLN -> token-mixer MLP, one persistent launch.
"""
def v(a, n=1): return f'v{a}' if n == 1 else f'v[{a}:{a+n-1}]'
def log2(x):
    l = x.bit_length() - 1
    return l if (1 << l) == x else None

def gen(stamps=0, D1=3, D2=3, D3=4, N3=24, STAT=20, force_fb=0, abl=0, N2=3,
        ROT=0, GRP=0, SL=8448, cpf=1, OS=0, GS=0, nost=0, NET=128, loc=1, r1st=0, NL=14, cpf0=1, tlb=0, K0=3, B0e=0,
        WOAT=31, WOC=8, PREAT=31, MRP=2, PT1=1, O2F=0, OST=32, hold=0, TH_=17, TQ=39, TGC=8, O1=1, PR=99, DQ=0, QO=0, norsc=0, FS=1, GSC=0, notab=0, DA=0, NA0=0, NA1=0, ALT=0, PACE=0, B0p=2, enc=-1, PLD=1, OB=2, PW=0, IL=1, JS=3, PAIR=0):
    ST = 0x8000; CS = 0x10000; XS = 0x12000; HR = 0x14000; TB = 0x18000; Q2 = 0x20000; O2 = 0x40000
    SLOT = 0x60000
    MODP = SLOT; QP = SLOT + 1024; MODR = SLOT + 2048; AP = SLOT + 3072; OP = SLOT + 4096
    WS_USED = SLOT + 256 * SL
    LOC = '' if loc else 'sc1'
    A = Asm()
    A.raw(HEADER.rstrip())
    A.raw(f'; @launch grid=(256,1,1) block=(768,1,1) lds={LV + 8 * NL * 1024}')
    A.raw('.amdgcn_target "amdgcn-amd-amdhsa--gfx950"')
    A.raw('.text'); A.raw(f'.globl {KN}'); A.raw('.p2align 8'); A.raw(f'.type {KN},@function'); A.raw(f'{KN}:')
    SB = 72
    def stamp(i):
        if enc == i: A('s_memrealtime s[74:75]\ns_waitcnt lgkmcnt(0)')
        if stamps: A(f's_memrealtime s[70:71]\ns_waitcnt lgkmcnt(0)\ns_mov_b32 s{SB+i}, s70')
    def stamp_flush(n):
        if not stamps: return
        A('s_waitcnt lgkmcnt(0) vmcnt(0)')
        A('s_mov_b64 exec, 1')
        A(f's_mul_i32 s4, s2, 12\ns_add_u32 s4, s4, s3\ns_lshl_b32 s4, s4, 7\ns_add_u32 s4, s4, {STAMP_OFF}')
        A('v_mov_b32 v1, s4\nv_mov_b32 v3, 0')
        for i in range(n):
            A(f'v_mov_b32 v2, s{SB+i}')
            A(f'global_store_dwordx2 v1, v[2:3], s[42:43] offset:{8*i}')
            A('s_nop 1')
    def sexpr(dst, terms, const=0, tmp='s5'):
        first = True
        for src, pos, n, mult in terms:
            t = dst if first else tmp
            A(f's_bfe_u32 {t}, {src}, {hex((n << 16) | pos)}')
            if mult != 1:
                l = log2(mult)
                A(f's_lshl_b32 {t}, {t}, {l}' if l is not None else f's_mul_i32 {t}, {t}, {mult}')
            if not first: A(f's_add_u32 {dst}, {dst}, {tmp}')
            first = False
        if first: A(f's_mov_b32 {dst}, {const}')
        elif const: A(f's_add_u32 {dst}, {dst}, {const}')
    def addr(dst, lane, sterms=(), const=0, tmp=None):
        has_s = bool(sterms) or const
        if has_s: sexpr('s4', sterms, const)
        acc = None
        for pos, n, mult in lane:
            l = log2(mult)
            t = dst if acc is None and not has_s else tmp
            if pos == 0 and n == 6: src = 'v0'
            elif pos + n == 6: A(f'v_lshrrev_b32 v{t}, {pos}, v0'); src = f'v{t}'
            elif pos == 0: A(f'v_and_b32 v{t}, {(1<<n)-1}, v0'); src = f'v{t}'
            else: A(f'v_bfe_u32 v{t}, v0, {pos}, {n}'); src = f'v{t}'
            prev = acc if acc is not None else ('s4' if has_s else None)
            if prev is None:
                A(f'v_lshlrev_b32 v{dst}, {l}, {src}' if l is not None else f'v_mul_u32_u24 v{dst}, {mult}, {src}')
            elif l is not None:
                A(f'v_lshl_add_u32 v{dst}, {src}, {l}, {prev}')
            else:
                A(f'v_mul_u32_u24 v{t}, {mult}, {src}\nv_add_u32 v{dst}, {prev}, v{t}')
            acc = f'v{dst}'
    def rnd2(a, b, tmp):
        A(f'v_cvt_pk_bf16_f32 v{tmp}, v{a}, v{b}\nv_lshlrev_b32 v{a}, 16, v{tmp}\nv_and_b32 v{b}, 0xffff0000, v{tmp}')
    def rnd1(a):
        A(f'v_cvt_pk_bf16_f32 v{a}, v{a}, v{a}\nv_and_b32 v{a}, 0xffff0000, v{a}')
    MK = 'row_mask:0xf bank_mask:0xf'
    X1_ = 'quad_perm:[1,0,3,2]'; X2_ = 'quad_perm:[2,3,0,1]'; HM = 'row_half_mirror'; RM = 'row_mirror'; R8 = 'row_ror:8'
    def red(op, regs, steps, tmp=None):
        for s in steps:
            if s in ('p16', 'p32'):
                for r, t in zip(regs, tmp): A(f'v_mov_b32 v{t}, v{r}')
                for r, t in zip(regs, tmp): A(f'v_permlane{s[1:]}_swap_b32 v{r}, v{t}')
                for r, t in zip(regs, tmp): A(f'{op} v{r}, v{r}, v{t}')
            else:
                for r in regs: A(f'{op}_dpp v{r}, v{r}, v{r} {s} {MK}')
    def tred(kind, pairs):
        for a, b in pairs: A(f'v_permlane{kind}_swap_b32 v{a}, v{b}')
        for a, b in pairs: A(f'v_add_f32 v{a}, v{a}, v{b}')
    def embed(dst, srcs, rnd=True):
        if rnd:
            for k, s in enumerate(srcs): A(f'v_add_u32 v{dst+k}, 0x80, v{s}')
            srcs = range(dst, dst + 4)
        for k, s in enumerate(srcs): A(f'v_bfi_b32 v{dst+k}, v3, s{56+k}, v{s}')
    def wsload(r, vaddr, o):
        so = o & ~0xfff; io = o & 0xfff
        if so: A(f's_mov_b32 s11, {so}')
        A(f'buffer_load_dwordx4 {v(r,4)}, v{vaddr}, s[44:47], {"s11" if so else "0"} offen offset:{io} sc1')
    mk = lambda i: f's[{86+2*i}:{87+2*i}]'
    def check(r, i, tmp, full):
        if full == 2:
            A(f'v_xor_b32 v{tmp}, s60, v{r+1}\nv_bitop3_b32 v{tmp}, v{tmp}, v{r+3}, s60 bitop3:0xf6\nv_cmp_ne_u32 {mk(i)}, 0, v{tmp}')
        elif full: A(f'v_cmp_ne_u32 {mk(i)}, s60, v{r+3}')
        else:
            for k in range(4): A(f'v_xor_b32 v{r+k}, s{56+k}, v{r+k}')
            A(f'v_or3_b32 v{tmp}, v{r}, v{r+1}, v{r+2}')
            A(f'v_bitop3_b32 v{tmp}, v{tmp}, v{r+3}, v3 bitop3:0xa8')
            A(f'v_cmp_ne_u32 {mk(i)}, 0, v{tmp}')
    def spin(dst, vaddr, offs, tmp, full=False, net=False, sleep=0, mid=None):
        if abl & 2:
            if mid: A('s_waitcnt vmcnt(0)'); mid()
            return
        n = len(offs)
        L = A.newlabel('Lsp'); E = A.newlabel('Lspe'); R = A.newlabel('Lspr')
        for i, o in enumerate(offs): A(f's_mov_b32 s{88+i}, {o & ~0xfff}')
        A(f's_mov_b32 s10, {POLL_LIMIT}')
        def loads():
            for i, o in enumerate(offs): A(f'buffer_load_dwordx4 {v(dst+4*i,4)}, v{vaddr}, s[44:47], s{88+i} offen offset:{o & 0xfff} sc1')
        if mid:
            loads(); mid(); A(f's_branch {R}')
        A.label(L)
        loads()
        A.label(R)
        A('s_sub_u32 s10, s10, 1')
        A(f's_and_b32 s8, s10, {NET-1}')
        X = A.newlabel('Lspx'); Y = A.newlabel('Lspy')
        A(f's_cbranch_scc0 {X}')
        A.label(Y)
        for i in range(n):
            r = dst + 4 * i
            A(f's_waitcnt vmcnt({n-1-i})')
            if full == 2: A(f'v_xor_b32 v{tmp}, s60, v{r+1}\nv_bitop3_b32 v{tmp}, v{tmp}, v{r+3}, s60 bitop3:0xf6')
            elif full: A(f'v_xor_b32 v{tmp}, s60, v{r+3}')
            else:
                for k in range(4): A(f'v_xor_b32 v{r+k}, s{56+k}, v{r+k}')
                if i == 0: A(f'v_or_b32 v{tmp}, v{r}, v{r+1}')
                else: A(f'v_or3_b32 v{tmp}, v{tmp}, v{r}, v{r+1}')
                A(f'v_or3_b32 v{tmp}, v{tmp}, v{r+2}, v{r+3}')
        if not full: A(f'v_and_b32 v{tmp}, 0xff, v{tmp}')
        A(f'v_cmp_ne_u32 vcc, 0, v{tmp}')
        if sleep:
            A(f's_cbranch_vccz {E}\ns_sleep {sleep}\ns_branch {L}')
        else:
            A.raw('    s_cbranch_vccnz ' + L)
        A.label(E)
        cold.append((X, Y, E, net))
    cold = []; slow = []
    def gather(dst, n, vaddr, offs, tmp, full=False, th=0, mid=None, kind=2, sleep=0, net=False, extra=0, retry=None, phase=3):
        if abl & kind:
            if mid: A('s_waitcnt vmcnt(0)'); mid()
            return
        L = A.newlabel('Lpoll'); E = A.newlabel('Lpend')
        if phase & 1:
            for i in range(n): wsload(dst + 4 * i, vaddr, offs[i])
            if mid: mid()
            for i in range(n):
                A(f's_waitcnt vmcnt({n-1-i+extra})'); check(dst + 4 * i, i, tmp, full)
        if not phase & 2: return
        A(f's_mov_b32 s10, {POLL_LIMIT}')
        if phase == 2:
            L0 = A.newlabel('Lp0'); A(f's_branch {L0}')
        A.label(L)
        if n == 1:
            if th: A(f's_bcnt1_i32_b64 s8, {mk(0)}\ns_cmp_le_u32 s8, {th}')
            else: A(f's_cmp_eq_u64 {mk(0)}, 0')
            A(f's_cbranch_scc1 {E}')
        else:
            A(f's_or_b64 s[8:9], {mk(0)}, {mk(1)}')
            for i in range(2, n): A(f's_or_b64 s[8:9], s[8:9], {mk(i)}')
            A(f's_cbranch_scc0 {E}')
        A('s_sub_u32 s10, s10, 1')
        A(f's_cbranch_scc1 {E}')
        if retry: retry()
        if sleep: A(f's_sleep {sleep}')
        if net:
            Nn = A.newlabel('Lnet')
            A(f's_and_b32 s8, s10, {NET-1}\ns_cbranch_scc1 {Nn}')
            A('s_mov_b64 exec, -1\nbuffer_wbl2 sc1\ns_waitcnt vmcnt(0)\nbuffer_inv sc1\ns_waitcnt vmcnt(0)')
            A.label(Nn)
        if phase == 2: A.label(L0)
        for i in range(n):
            A(f's_mov_b64 exec, {mk(i)}')
            if n > 1:
                S = A.newlabel('Lsk'); A(f's_cbranch_execz {S}')
            wsload(dst + 4 * i, vaddr, offs[i])
            if n > 1: A.label(S)
        if phase == 2 and mid: mid()
        A('s_waitcnt vmcnt(0)')
        for i in range(n):
            if n > 1:
                S = A.newlabel('Lsk'); A(f's_mov_b64 exec, {mk(i)}'); A(f's_cbranch_execz {S}')
            check(dst + 4 * i, i, tmp, full)
            if n > 1: A.label(S)
        A(f's_branch {L}')
        A.label(E)
        A('s_mov_b64 exec, -1')
    def lds_spin(off, val, vt, sleep=1):
        L = A.newlabel('Lspin'); E = A.newlabel('Lspe')
        A(f's_mov_b32 s10, {POLL_LIMIT*20}\nv_mov_b32 v{vt+1}, 0')
        A.label(L)
        A(f'ds_read_b32 v{vt}, v{vt+1} offset:{off}')
        A('s_waitcnt lgkmcnt(0)')
        A(f'v_readfirstlane_b32 s11, v{vt}')
        A(f's_cmp_ge_u32 s11, {val}')
        A(f's_cbranch_scc1 {E}')
        if sleep: A(f's_sleep {sleep}')
        A('s_sub_u32 s10, s10, 1')
        A(f's_cbranch_scc0 {L}')
        A.label(E)
    def lds_inc(off, vt, rtn=False):
        A(f'v_mov_b32 v{vt}, 0\nv_mov_b32 v{vt+1}, 1')
        A('s_waitcnt lgkmcnt(0)')
        A('s_mov_b64 exec, 1')
        if rtn: A(f'ds_add_rtn_u32 v{vt+1}, v{vt}, v{vt+1} offset:{off}')
        else: A(f'ds_add_u32 v{vt}, v{vt+1} offset:{off}')
        A('s_mov_b64 exec, -1')
        if rtn:
            A('s_waitcnt lgkmcnt(0)')
            A(f'v_readfirstlane_b32 s4, v{vt+1}')
    def tile_loads(dst, vaddr, srd, stride, row0=0, rng=range(8), pw=0):
        for i in rng:
            if pw: A(f's_waitcnt vmcnt({pw-1})')
            o = (row0 + i) * stride
            if o: A(f's_mov_b32 s11, {o}')
            A(f'buffer_load_dwordx4 {v(dst+4*i,4)}, v{vaddr}, {srd}, {"s11" if o else "0"} offen nt')
    def perm_pair(f0, f1, raw, t):
        for b in range(4):
            X = raw + 8 * b + t; Y = X + 4
            A(f'v_perm_b32 v{f0+b}, v{Y}, v{X}, s12')
            A(f'v_perm_b32 v{f1+b}, v{Y}, v{X}, s13')
    def perm_all(dst, raw):
        for t in range(4): perm_pair(dst + 8 * t, dst + 8 * t + 4, raw, t)
    def mfma(acc, a, b, first):
        A(f'v_mfma_f32_16x16x32_bf16 {v(acc,4)}, {v(a,4)}, {v(b,4)}, {"0" if first else v(acc,4)}')
    def select_out(dst, acc):
        for k in range(4): A(f'v_cndmask_b32 v{dst+k}, v{acc+4*k}, v{acc+16+4*k}, s[14:15]')
    stid = [0]
    def wsstore(r, vaddr, soff='0', fl='sc1'):
        stid[0] += 1
        if abl & 32 or (nost >> (stid[0] - 1)) & 1: return
        A(f'buffer_store_dwordx4 {v(r,4)}, v{vaddr}, s[44:47], {soff} offen {fl}')
    def locstore(r, vaddr, soff='0'):
        if not loc: return wsstore(r, vaddr, soff)
        L1 = A.newlabel('Lst'); L2 = A.newlabel('Lst')
        A(f's_cmp_lg_u32 s67, 0\ns_cbranch_scc1 {L1}')
        wsstore(r, vaddr, soff, '')
        A.label(L2)
        slow.append((L1, L2, r, vaddr, soff))
    def tags():
        A('s_add_u32 s60, s60, 0x01010101')
        A('s_and_b32 s56, s60, 0xff\ns_bfe_u32 s57, s60, 0x80008\ns_bfe_u32 s58, s60, 0x80010\ns_lshr_b32 s59, s60, 24')
    def srd(n, base, size):
        A(f's_mov_b32 s{n}, s{base}\ns_mov_b32 s{n+1}, s{base+1}\ns_mov_b32 s{n+2}, {size}\ns_mov_b32 s{n+3}, 0x20000')
    G_ = ('s2', 0, 3); C_ = ('s2', 3, 5); CW = ('s3', 0, 2)
    T_ = lambda f, m: f + (m,)

    A('s_cmp_ge_u32 s2, 256\ns_cbranch_scc1 L_end')
    A('s_load_dwordx16 s[16:31], s[0:1], 0')
    A('s_load_dwordx8 s[32:39], s[0:1], 64')
    A('s_load_dwordx2 s[40:41], s[0:1], 96')
    A('s_load_dwordx2 s[42:43], s[0:1], 112')
    if stamps or hold: A('s_memrealtime s[70:71]')
    A('v_lshrrev_b32 v1, 6, v0')
    A('v_and_b32 v0, 63, v0')
    A('v_readfirstlane_b32 s3, v1')
    A('s_mov_b32 s12, 0x05040100\ns_mov_b32 s13, 0x07060302')
    A('s_cmp_lt_u32 s3, 4')
    A('s_cbranch_scc1 L_ctrl')

    KB = 40; QF = 4; CT = 12; S = 20; T = 36; OA = 136
    USTEP = (1 << 20) if GRP else 32768
    A('s_setprio 1')
    if cpf0:
        A('s_cmp_lg_u32 s3, 4\ns_cbranch_scc1 L_cp0')
        A('s_getpc_b64 s[8:9]')
        A.label('L_pc0')
        A(f's_lshr_b32 s4, s2, 3\ns_lshl_b32 s4, s4, 10\ns_min_u32 s4, s4, L_codeend-L_pc0-1024\nv_lshlrev_b32 v4, 4, v0\nv_add_u32 v4, s4, v4')
        A('global_load_dwordx4 v[32:35], v4, s[8:9]')
        A.label('L_cp0')
    addr(1, [(1, 1, 8192 if IL else 1024), (2, 2, 256), (4, 2, 32), (0, 1, 16)], tmp=4)
    A('v_lshlrev_b32 v2, 4, v0')
    addr(39, [(1, 3, 256), (4, 2, 32), (0, 1, 16)], tmp=4)
    A('s_sub_u32 s6, s3, 4')
    if JS: A(f's_bfe_u32 s4, s3, {hex(0x10000 | (JS - 1))}\ns_lshl_b32 s4, s4, 7\nv_xor_b32 v1, s4, v1\nv_xor_b32 v20, 128, v1\nv_xor_b32 v39, s4, v39\nv_xor_b32 v38, 128, v39')
    sexpr('s4', [T_(G_, 1 << 23), T_(C_, 32768 if GRP else 262144), ('s6', 0, 3, 1024 if IL else 4096)])
    A(f's_lshr_b32 s61, s2, 3\ns_mul_i32 s61, s61, {ROT*USTEP}\ns_and_b32 s61, s61, {8*USTEP-1}')
    A(f's_sub_u32 s5, {64<<20}, s4')
    A('s_mov_b32 s14, 0xaaaaaaaa\ns_mov_b32 s15, 0xaaaaaaaa')
    A('v_mov_b32 v3, 0xffff\nv_mov_b32 v9, 0xffff0000\nv_cndmask_b32 v3, v3, v9, s[14:15]')
    A('s_waitcnt lgkmcnt(0)')
    if stamps: A(f's_mov_b32 s{SB}, s70')
    A('s_add_u32 s48, s18, s4\ns_addc_u32 s49, s19, 0\ns_mov_b32 s50, s5\ns_mov_b32 s51, 0x20000')
    A('s_add_u32 s52, s20, s4\ns_addc_u32 s53, s21, 0\ns_mov_b32 s54, s5\ns_mov_b32 s55, 0x20000')
    issued = [0]; nv = [0]
    def wait_load(k): A(f's_waitcnt vmcnt({max(issued[0] - 1 - k, 0)})')
    def unit(n):
        if n % 4 == 0:
            A('s_mov_b32 s7, s61' if n == 0 else f's_add_u32 s7, s7, {USTEP}\ns_and_b32 s7, s7, {8*USTEP-1}')
    def kload(n):
        d = DA if (DA and NA0 <= n < NA1) else D1
        if ALT and n % ALT == ALT - 1: d -= 1
        if PAIR:
            if n % 2 == 0 and n >= K0: A(f's_waitcnt vmcnt({PAIR-2})')
        elif issued[0] >= d and n >= K0: A(f's_waitcnt vmcnt({d-1})')
        if IL:
            if n % 2 == 0: A('s_mov_b32 s7, s61' if n == 0 else f's_add_u32 s7, s7, 16384\ns_and_b32 s7, s7, 0x3ffff')
            if JS: A(f'buffer_load_dwordx4 {v(KB+4*n,4)}, v{(1, 20)[n&1]}, s[48:51], s7 offen nt')
            else: A(f'buffer_load_dwordx4 {v(KB+4*n,4)}, v1, s[48:51], s7 offen offset:{(n&1)*128} nt')
        else:
            unit(n); j = n % 4
            A(f'buffer_load_dwordx4 {v(KB+4*n,4)}, v1, s[48:51], s7 offen offset:{(j>>1)*2048+(j&1)*128} nt')
        issued[0] += 1
        if n == PR: A('s_cmp_lt_u32 s6, 4\ns_cbranch_scc1 L_pr\ns_setprio 2'); A.label('L_pr')
        if n == TH_: lds_inc(C_T1, T)
        if n == TQ: lds_inc(C_T2, T)
    def vslot(n): return KB + 4 * (n % 24)
    dq = [0]
    def dcur(): return dq[0] or (D3 if nv[0] >= N3 else D2)
    def vload():
        n = nv[0]
        A(f's_waitcnt vmcnt({dcur()-1-(1 if ALT and n % ALT == ALT - 1 and n < N3 else 0)})')
        if IL:
            A('s_mov_b32 s7, s61' if n == 0 else f's_add_u32 s7, s7, 8192\ns_and_b32 s7, s7, 0x3ffff')
            if n < NL:
                A(f's_add_u32 m0, s62, {n*1024}')
                A(f'buffer_load_dwordx4 v2, s[52:55], s7 offen nt lds')
            else:
                A(f'buffer_load_dwordx4 {v(vslot(n),4)}, v2, s[52:55], s7 offen nt')
        else: unit(n)
        if IL: pass
        elif n < NL:
            if n % 4 == 0: A(f's_add_u32 m0, s62, {n*1024}')
            A(f'buffer_load_dwordx4 v2, s[52:55], s7 offen offset:{(n%4)*1024} nt lds')
        else:
            A(f'buffer_load_dwordx4 {v(vslot(n),4)}, v2, s[52:55], s7 offen offset:{(n%4)*1024} nt')
        issued[0] += 1; nv[0] += 1
        if n + 32 == PR: A('s_cmp_lt_u32 s6, 4\ns_cbranch_scc1 L_pr\ns_setprio 2'); A.label('L_pr')
        if n + 32 == TQ: lds_inc(C_T2, T)
        if n == WOAT: lds_inc(C_WO, T)
        if n == STAT: lds_inc(C_V, T)
        if n == PREAT: lds_inc(C_XS, T)
    if tlb:
        A('s_cmp_lg_u32 s3, 5\ns_cbranch_scc1 L_tl0')
        A('s_mov_b64 exec, 1\nv_mov_b32 v4, 0')
        A('buffer_load_dword v32, v4, s[52:55], 0 offen nt')
        A('global_load_dword v33, v4, s[40:41]')
        A(f'v_mov_b32 v5, {0x100000}\nglobal_load_dword v34, v5, s[42:43]\nv_mov_b32 v6, {0x220000}\nglobal_load_dword v35, v6, s[42:43]')
        sexpr('s4', [T_(G_, 4 * 128 * 2048), ('s2', 3, 2, 128 * 2048)])
        A('v_mov_b32 v7, s4\nglobal_load_dword v31, v7, s[24:25] nt')
        sexpr('s4', [('s2', 4, 3, 128 * 12288)])
        A('v_mov_b32 v8, s4\nglobal_load_dword v30, v8, s[38:39] nt')
        A(f'v_add_u32 v8, {127*12288}, v8\nglobal_load_dword v29, v8, s[38:39] nt')
        A('global_load_ushort v28, v4, s[34:35]')
        A('s_mov_b64 exec, -1')
        A.label('L_tl0')
    stamp(5)
    for n in range(K0): kload(n)
    A('s_barrier')
    stamp(6)
    A(f's_mul_i32 s62, s6, {NL*1024}\ns_add_u32 s62, s62, {LV}')
    for n in range(K0, 32):
        kload(n)
        if n == D1: stamp(7)
    for n in range(NL): vload()
    stamp(1)
    lds_spin(C_Q, 4, 4)
    stamp(2)
    A(f'ds_read_b128 {v(QF,4)}, v39 offset:{LQ}')
    A(f'ds_read_b128 {v(QF+4,4)}, v38 offset:{LQ}' if JS else f'ds_read_b128 {v(QF+4,4)}, v39 offset:{LQ+128}')
    A('s_waitcnt lgkmcnt(0)')
    def qk_fin(b, par):
        c = CT + 4 * par
        A(f'v_cndmask_b32 v{T}, v{c+2}, v{c+1}, s[14:15]')
        A(f'v_cndmask_b32 v{S+b}, v{c}, v{c+3}, s[14:15]')
        A(f'v_add_f32_dpp v{S+b}, v{T}, v{S+b} {X1_} {MK}')
    assert NL >= max(D1, D2)
    order = [(b + NL // 2) % 16 for b in range(16)] if QO else list(range(16))
    if DQ: dq[0] = DQ
    for i, b in enumerate(order):
        c = CT + 4 * (i & 1)
        mfma(c, KB + 8 * b, QF, True)
        mfma(c, KB + 8 * b + 4, QF + 4, False)
        if i >= 1: qk_fin(order[i - 1], (i - 1) & 1)
        if QO:
            if i in ((0, 1, 2, 8, 15) if QO == 1 else (0, 1, 2, 3, 9, 15)): vload()
        elif b - NL // 2 in (0, 1, 2) or b == 13: vload()
    qk_fin(order[15], 1)
    A(f's_mov_b32 s4, {hx(f2u(128 ** -0.5 * (1 if norsc < 2 else 1 - 0.02 * norsc)))}')
    for i in range(0, 16, 2):
        if not norsc: rnd2(S + i, S + i + 1, T + (i // 2) % 2)
        A(f'v_mul_f32 v{S+i}, s4, v{S+i}\nv_mul_f32 v{S+i+1}, s4, v{S+i+1}')
        if not norsc: rnd2(S + i, S + i + 1, T + 2 + (i // 2) % 2)
    M = 12; Lr = 13
    A(f'v_max3_f32 v{M}, v{S}, v{S+1}, v{S+2}')
    for i in range(3, 15, 2): A(f'v_max3_f32 v{M}, v{M}, v{S+i}, v{S+i+1}')
    A(f'v_max_f32 v{M}, v{M}, v{S+15}')
    red('v_max_f32', [M], [X1_, 'p16', 'p32'], [T])
    vload()
    A(f's_mov_b32 s4, {hx(f2u(LOG2E))}')
    for i in range(16): A(f'v_sub_f32 v{S+i}, v{S+i}, v{M}')
    for i in range(16): A(f'v_mul_f32 v{S+i}, s4, v{S+i}')
    for i in range(16): A(f'v_exp_f32 v{S+i}, v{S+i}')
    A(f'v_add_f32 v{Lr}, v{S}, v{S+1}')
    for i in range(2, 16): A(f'v_add_f32 v{Lr}, v{Lr}, v{S+i}')
    if QO: vload()
    for i in range(16): A(f'v_cvt_pk_bf16_f32 v{S+i}, v{S+i}, v{S+i}')
    for i in range(16): A(f'v_and_b32 v{S+i}, v3, v{S+i}')
    red('v_add_f32', [Lr], [X1_, 'p16', 'p32'], [T])
    addr(14, [(0, 6, 4)], [('s6', 0, 3, 64)])
    A('s_mov_b64 exec, 0x5555')
    A(f'ds_write_b64 v14, v[{M}:{Lr}] offset:{LST}')
    A('s_mov_b64 exec, -1')
    vload()
    lds_inc(C_ST, T)
    dq[0] = 0
    stamp(3)
    PT = 4
    if NL:
        wait_load(32 + NL - 1)
        A('v_add_u32 v4, s62, v2')
        for n in range(NL): A(f'ds_read_b128 {v(vslot(n),4)}, v4 offset:{n*1024}')
        A('s_waitcnt lgkmcnt(0)')
    for tau in range(4):
        raw = vslot(8 * tau)
        if tau < 3:
            lim = min(32, 8 * tau + 24)
            while nv[0] < lim and (issued[0] - 1 - (32 + 8 * tau + 7)) < dcur(): vload()
            wait_load(32 + 8 * tau + 7)
            for t in range(4):
                f0 = PT + 8 * (t & 1); f1 = f0 + 4
                perm_pair(f0, f1, raw, t)
                mfma(OA + 8 * t, S + 4 * tau, f0, tau == 0)
                mfma(OA + 8 * t + 4, S + 4 * tau, f1, tau == 0)
        else:
            while nv[0] < 32: vload()
            addr(4, [(4, 2, 1024), (0, 4, 16)], [('s6', 0, 3, NL * 1024)], LV, tmp=5)
            A('v_xor_b32 v5, 128, v4')
            FB = vslot(8)
            for b in range(4):
                wait_load(32 + 24 + 2 * b + 1)
                for t in range(4):
                    X = raw + 8 * b + t; Y = X + 4
                    A(f'v_perm_b32 v{FB+8*t+b}, v{Y}, v{X}, s12')
                    A(f'v_perm_b32 v{FB+8*t+4+b}, v{Y}, v{X}, s13')
                    if b == 3 and t >= 1:
                        for n in (2 * t - 2, 2 * t - 1): mfma(OA + 4 * n, S + 12, FB + 4 * n, False)
            for n in (6, 7): mfma(OA + 4 * n, S + 12, FB + 4 * n, False)
    W = 40
    for hq in range(2):
        for n in range(4 * hq, 4 * hq + 4):
            A(f'v_add_f32 v{W+n}, v{OA+4*n}, v{OA+4*n+1}')
            A(f'v_add_f32 v{W+8+n}, v{OA+4*n+2}, v{OA+4*n+3}')
        A(f'ds_write_b128 v{4+hq}, {v(W+4*hq,4)} offset:{256*hq}')
        A(f'ds_write_b128 v{4+hq}, {v(W+8+4*hq,4)} offset:{512+256*hq}')
    A('s_waitcnt lgkmcnt(0)')
    stamp(4)
    A('s_barrier')
    if PLD == 0:
        A(f's_and_b32 s4, s2, {7 ^ (1 << OB)}\ns_cbranch_scc1 L_s9')
        A('s_cmp_ge_u32 s6, 3\ns_cbranch_scc1 L_s9')
        A('s_load_dword s60, s[42:43], 0')
        srd(44, 42, WS_USED)
        A(f'v_mov_b32 v3, 0xff\ns_mul_i32 s4, s6, 7168\ns_min_u32 s4, s4, {NB*1024-7168}\nv_add_u32 v4, s4, v2\nv_add_u32 v6, {TB}, v4')
        A('s_waitcnt lgkmcnt(0)')
        tags()
        gather(104, 7, 6, [1024 * i for i in range(7)], 5)
        for i in range(7): A(f'ds_write_b128 v4, {v(104+4*i,4)} offset:{LT+1024*i}')
        lds_inc(C_PL, 8)
    A.label('L_s9')
    stamp_flush(8)
    A('s_endpgm')

    A.label('L_ctrl')
    A('s_setprio 3')
    A('v_mov_b32 v3, 0xff')
    HI = (4, 2); LOf = (0, 4)
    CF = 4; PTc = 24; GR = 104; BF = 136; AC2 = 104
    def silu(src, n, dst, tmp):
        A(f's_mov_b32 s4, {hx(f2u(-LOG2E))}')
        m = 2 * n
        for r in range(n): A(f'v_lshlrev_b32 v{tmp+m+2*r}, 16, v{src+r}\nv_and_b32 v{tmp+m+2*r+1}, 0xffff0000, v{src+r}')
        for r in range(m): A(f'v_mul_f32 v{tmp+r}, s4, v{tmp+m+r}')
        for r in range(m): A(f'v_exp_f32 v{tmp+r}, v{tmp+r}')
        for r in range(m): A(f'v_add_f32 v{tmp+r}, 1.0, v{tmp+r}')
        for r in range(m): A(f'v_rcp_f32 v{tmp+r}, v{tmp+r}')
        for r in range(m): A(f'v_mul_f32 v{tmp+r}, v{tmp+r}, v{tmp+m+r}')
        for r in range(n): A(f'v_cvt_pk_bf16_f32 v{dst+r}, v{tmp+2*r}, v{tmp+2*r+1}')
    def tile_mfma(raw, a, AC, first):
        for t in range(4):
            f0 = PTc + 8 * (t & 1); f1 = f0 + 4
            perm_pair(f0, f1, raw, t)
            mfma(AC + 8 * t, a, f0, first)
            mfma(AC + 8 * t + 4, a, f1, first)
    def sigma(a):
        rnd2(a, a + 1, a + 2)
        A(f'v_add_f32 v{a+1}, {hx(f2u(1e-5))}, v{a+1}')
        rnd1(a + 1)
        A(f'v_sqrt_f32 v{a+1}, v{a+1}')
        rnd1(a + 1)
        A(f'v_rcp_f32 v{a+1}, v{a+1}')
    def sumn(dst, n, src=GR):
        for k in range(4): A(f'v_add_f32 v{dst+k}, v{src+k}, v{src+4+k}')
        for i in range(2, n):
            for k in range(4): A(f'v_add_f32 v{dst+k}, v{dst+k}, v{src+4*i+k}')
    def afrag(lo2):
        for k in range(4): A(f'v_mov_b32_dpp v{4+k}, v{lo2+(k&1)} quad_perm:{"[0,0,2,2]" if k < 2 else "[1,1,3,3]"} {MK}')
    def red4_publish(vaddr, lr, rnd=True, fl='sc1'):
        for i in range(4): A(f'ds_read_b128 {v(GR+4*i,4)}, v18 offset:{lr+1024*i}')
        A('s_waitcnt lgkmcnt(0)')
        for k in range(4): A(f'v_add_f32 v{4+k}, v{GR+k}, v{GR+4+k}\nv_add_f32 v{8+k}, v{GR+8+k}, v{GR+12+k}')
        for k in range(4): A(f'v_add_f32 v{4+k}, v{4+k}, v{8+k}')
        embed(8, [4, 5, 6, 7], rnd)
        wsstore(8, vaddr, fl=fl)
    TW = 40; TR = 72; TC = 96; TA = 102; TU = 104; TE = 118
    def tab_load(sidx):
        A(f's_mul_i32 s4, {sidx}, 1792\nv_mul_u32_u24 v4, 28, v0\nv_add_u32 v4, s4, v4')
        if notab & 2: A('v_mov_b32 v4, 0')
        for a_, sp in enumerate(('s[28:29]', 's[30:31]', 's[32:33]')):
            A(f'global_load_dwordx4 {v(TR+8*a_,4)}, v4, {sp}')
            A(f'global_load_dwordx3 {v(TR+8*a_+4,3)}, v4, {sp} offset:16')
    def tab_unpack():
        A('s_waitcnt vmcnt(0)')
        for a in range(3):
            for i in range(7):
                d = TW + 14 * a + 2 * i
                A(f'v_lshlrev_b32 v{d}, 16, v{TR+8*a+i}\nv_and_b32 v{d+1}, 0xffff0000, v{TR+8*a+i}')
        for i in range(7):
            A(f'v_pk_mul_f32 {v(TW+42+2*i,2)}, {v(TW+14+2*i,2)}, {v(TW+28+2*i,2)}')
            A(f'v_pk_mul_f32 {v(TW+28+2*i,2)}, {v(TW+2*i,2)}, {v(TW+28+2*i,2)}')
    ca = -2.0 * 0.7978845608028654 * LOG2E
    def tab_consts():
        A(f'v_mov_b32 v{TC}, {hx(f2u(ca))}\nv_mov_b32 v{TC+1}, {hx(f2u(ca))}')
        A(f'v_mov_b32 v{TC+2}, {hx(f2u(ca*0.044715))}\nv_mov_b32 v{TC+3}, {hx(f2u(ca*0.044715))}')
        A(f'v_mov_b32 v{TC+4}, 1.0\nv_mov_b32 v{TC+5}, 1.0')
    def tab_eval():
        P = lambda r: v(r, 2)
        for i in range(7): A(f'v_pk_fma_f32 {P(TU+2*i)}, {P(TW+2*i)}, s[64:65], {P(TW+14+2*i)}')
        for i in range(7): A(f'v_pk_mul_f32 {P(TE+2*i)}, {P(TU+2*i)}, {P(TU+2*i)}')
        for i in range(7): A(f'v_pk_fma_f32 {P(TE+2*i)}, {P(TE+2*i)}, {P(TC+2)}, {P(TC)}')
        for i in range(7): A(f'v_pk_mul_f32 {P(TE+2*i)}, {P(TE+2*i)}, {P(TU+2*i)}')
        for i in range(14): A(f'v_exp_f32 v{TE+i}, v{TE+i}')
        for i in range(7): A(f'v_pk_fma_f32 {P(TU+2*i)}, {P(TW+28+2*i)}, s[64:65], {P(TW+42+2*i)}')
        for i in range(7): A(f'v_pk_add_f32 {P(TE+2*i)}, {P(TE+2*i)}, {P(TC+4)}')
        for i in range(14): A(f'v_rcp_f32 v{TE+i}, v{TE+i}')
        A(f'v_pk_mul_f32 {P(TA)}, {P(TU)}, {P(TE)}')
        for i in range(1, 7): A(f'v_pk_fma_f32 {P(TA)}, {P(TU+2*i)}, {P(TE+2*i)}, {P(TA)}')
        A(f'v_add_f32 v{TA}, v{TA}, v{TA+1}')
    def tab_to(n, until=C_NV, rel=False):
        if rel: A(f's_add_u32 s5, s66, {n}\ns_min_u32 s5, s5, {NB}')
        else: A(f's_mov_b32 s5, {n}')
        A(f's_mov_b32 s63, {until}')
        A('s_call_b64 s[68:69], L_tab')
    def pack_afrag(r):
        A(f'v_perm_b32 v12, v{r+1}, v{r}, s13\nv_perm_b32 v13, v{r+3}, v{r+2}, s13')
        afrag(12)
    def embed_bf(dst, srcs):
        for k, s_ in enumerate(srcs): A(f'v_or_b32 v{dst+k}, s{56+k}, v{s_}')
    CG = ('s2', 0, 4); RG = ('s2', 4, 4)
    addr(12, [HI + (8 * 12288,), LOf + (16,)], [T_(RG, 64 * 12288), T_(CG, 256)], tmp=15)
    addr(13, [(2, 1, 2048), HI + (16,)], [T_(RG, 128)], tmp=15)
    A(f'v_mov_b32 v14, 0\nv_lshlrev_b32 v15, 2, v0\ns_mov_b64 exec, 0xffff\nds_write_b32 v15, v14 offset:{LCNT}\ns_mov_b64 exec, -1')
    addr(14, [HI + (8 * 8192,), LOf + (16,)], [('s2', 5, 3, 128 * 8192), T_(CW, 32 * 8192), T_(G_, 1024), ('s2', 3, 2, 256)], tmp=16)
    RG8 = ('s2', 4, 3); CT_ = ('s2', 7, 1)
    addr(17, [HI + (8 * 12288,), LOf + (16,)], [T_(RG8, 128 * 12288), T_(CW, 32 * 12288), T_(CT_, 4096), T_(CG, 256)], 4096, tmp=16)
    A('v_lshlrev_b32 v18, 4, v0')
    A('s_cmp_lt_u32 s2, 64\ns_cselect_b32 s67, s3, 0')
    A('s_waitcnt lgkmcnt(0)')
    if stamps: A(f's_mov_b32 s{SB}, s70')
    srd(48, 38, 12 << 20)
    A('s_cmp_lg_u32 s3, 0\ns_cbranch_scc1 L_c0')
    A(f'global_load_dwordx4 {v(CF,4)}, v13, s[36:37]')
    A(f'global_load_dwordx4 {v(CF+4,4)}, v13, s[36:37] offset:64')
    tile_loads(40, 12, 's[48:51]', 12288, 0, pw=PW and PW + 3)
    tile_loads(136, 12, 's[48:51]', 12288, 32, pw=PW and PW + 3)
    A.label('L_c0')
    XR = 40
    RB = ('s2', 3, 1); RD = ('s2', 4, 2)
    A('s_cmp_lg_u32 s67, 1\ns_cbranch_scc1 L_c1')
    addr(15, [(0, 6, 16)], [T_(RB, 2048)])
    for i in range(2): A(f'global_load_dwordx4 {v(XR+4*i,4)}, v15, s[16:17] offset:{1024*i}')
    addr(15, [(0, 3, 8)], [T_(RB, 2048), T_(G_, 256), T_(RD, 64)], tmp=16)
    A(f'global_load_dwordx2 {v(XR+8,2)}, v15, s[16:17]')
    A.label('L_c1')
    if B0p == 0: A('s_barrier')
    A('s_load_dword s60, s[42:43], 0')
    srd(52, 22, 8 << 20)
    tile_loads(GR, 17, 's[48:51]', 12288, pw=PW)
    if B0p == 1: A('s_barrier')
    A('s_cmp_eq_u32 s3, 0\ns_cbranch_scc1 L_c1b')
    tile_loads(BF, 14, 's[52:55]', 8192, pw=PW)
    A.label('L_c1b')
    if B0p == 2: A('s_barrier')
    A('s_mov_b32 s14, 0\ns_mov_b32 s15, -1')
    srd(44, 42, WS_USED)
    addr(16, [(4, 1, 512), LOf + (32,), (5, 1, 16)], [T_(CW, 1024)], tmp=15)
    A('s_lshl_b32 s4, s3, 10\nv_add_u32 v19, s4, v18')
    A(f's_and_b32 s4, s2, 127\ns_mul_i32 s4, s4, {NB}\ns_add_u32 s4, s4, {E0*128}\ns_lshl_b32 s4, s4, 16\ns_lshr_b32 s5, s2, 7\ns_lshl_b32 s5, s5, 31\ns_or_b32 s64, s4, s5')
    A('s_lshl_b32 s6, s3, 4\ns_mov_b32 s66, 0')
    A('s_waitcnt lgkmcnt(0)')
    tags()
    A('s_cmp_lg_u32 s3, 0\ns_cbranch_scc1 L_c2')
    A('s_waitcnt vmcnt(24)')
    silu(CF, 8, CF, 72)
    sexpr('s4', [T_(CG, 16 * SL), T_(RG, SL)], MODP)
    A('v_add_u32 v12, s4, v18')
    A('s_waitcnt vmcnt(16)')
    tile_mfma(40, CF, 72, True)
    A('s_waitcnt vmcnt(8)')
    tile_mfma(136, CF + 4, 72, False)
    select_out(PTc, 72)
    embed(PTc + 4, range(PTc, PTc + 4))
    wsstore(PTc + 4, 12, fl=LOC)
    tile_loads(BF, 14, 's[52:55]', 8192)
    A.label('L_c2')
    stamp(1)
    addr(13, [(2, 1, 2048), HI + (16,)], [T_(RG8, 256), T_(CW, 64)], tmp=15)
    A('global_load_dwordx4 v[96:99], v13, s[36:37]')
    tab_load('s3')
    A('s_cmp_lg_u32 s67, 1\ns_cbranch_scc1 L_c2b')
    A('s_waitcnt vmcnt(23)')
    XU = 52; LN = 20
    for r in range(8): A(f'v_lshlrev_b32 v{XU+2*r}, 16, v{XR+r}\nv_and_b32 v{XU+2*r+1}, 0xffff0000, v{XR+r}')
    st6 = [X1_, X2_, HM, RM, 'p16', 'p32']
    A(f'v_add_f32 v4, v{XU}, v{XU+1}')
    for i in range(2, 16): A(f'v_add_f32 v4, v4, v{XU+i}')
    red('v_add_f32', [4], st6, [6])
    A(f'v_mul_f32 v4, {hx(f2u(1.0/1024))}, v4')
    A(f'v_sub_f32 v6, v{XU}, v4\nv_mul_f32 v5, v6, v6')
    for i in range(1, 16): A(f'v_sub_f32 v{6+(i&1)}, v{XU+i}, v4\nv_fmac_f32 v5, v{6+(i&1)}, v{6+(i&1)}')
    red('v_add_f32', [5], st6, [6])
    A(f'v_mul_f32 v5, {hx(f2u(1.0/1024))}, v5')
    sigma(4)
    A(f'v_lshlrev_b32 v20, 16, v{XR+8}\nv_and_b32 v21, 0xffff0000, v{XR+8}\nv_lshlrev_b32 v22, 16, v{XR+9}\nv_and_b32 v23, 0xffff0000, v{XR+9}')
    for k in range(4): A(f'v_sub_f32 v{LN+k}, v{LN+k}, v4')
    rnd2(LN, LN + 1, 6); rnd2(LN + 2, LN + 3, 7)
    for k in range(4): A(f'v_mul_f32 v{LN+k}, v{LN+k}, v5')
    rnd2(LN, LN + 1, 6); rnd2(LN + 2, LN + 3, 7)
    A.label('L_c2b')
    A('s_waitcnt vmcnt(6)')
    silu(96, 4, CF, 40)
    tile_mfma(GR, CF, 40, True)
    select_out(8, 40)
    A(f'ds_write_b128 v16, v[8:11] offset:{LRED2}')
    tab_unpack(); tab_consts()
    A('s_cmp_lg_u32 s67, 1\ns_cbranch_scc1 L_c2d')
    addr(4, [(5, 1, 128 * SL), (3, 2, SL), (0, 1, 512), (1, 2, 16)], [T_(G_, 16 * SL), T_(RB, 256), T_(RD, 64)], MODP, tmp=5)
    if r1st == 1: stamp(7)
    gather(GR, 4, 4, [4 * SL * i for i in range(4)], 5, kind=1, net=True)
    if r1st == 1: stamp(8)
    sumn(4, 4)
    red('v_add_f32', [4, 5, 6, 7], [R8, 'p16'], [8, 9, 10, 11])
    rnd2(4, 5, 8); rnd2(6, 7, 9)
    for k in range(4): A(f'v_mov_b32 v{8+k}, v{4+k}')
    for k in range(4): A(f'v_permlane32_swap_b32 v{4+k}, v{8+k}')
    for k in range(4): A(f'v_add_f32 v{8+k}, 1.0, v{8+k}')
    rnd2(8, 9, 13); rnd2(10, 11, 14)
    for k in range(4): A(f'v_mul_f32 v{8+k}, v{8+k}, v{LN+k}')
    rnd2(8, 9, 13); rnd2(10, 11, 14)
    for k in range(4): A(f'v_add_f32 v{8+k}, v{4+k}, v{8+k}')
    rnd2(8, 9, 13); rnd2(10, 11, 14)
    embed_bf(8, [8, 9, 10, 11])
    addr(4, [(0, 6, 16)], [T_(G_, 1024), T_(RB, 512), T_(RD, 128)], HR)
    A('s_mov_b64 exec, 0xff')
    wsstore(8, 4)
    A('s_mov_b64 exec, -1')
    A.label('L_c2d')
    tab_to(NB, C_T1)
    addr(4, [(2, 1, 512), HI + (32,), (0, 1, 16)], [('s2', 5, 3, 1024), T_(CW, 128)], HR, tmp=5)
    if TH_ < 99: lds_spin(C_T1, TGC, 6, sleep=2)
    stamp(2)
    gather(GR, 1, 4, [0], 5, kind=1, net=True)
    stamp(3)
    pack_afrag(GR)
    tile_mfma(BF, 4, AC2, True)
    sexpr('s4', [('s2', 0, 8, SL)], QP)
    A('v_add_u32 v14, s4, v18')
    select_out(8, AC2)
    A(f'ds_write_b128 v16, v[8:11] offset:{LRED}')
    lds_inc(C_P2, 12, rtn=True)
    A('s_cmp_lg_u32 s4, 3\ns_cbranch_scc1 L_c3')
    red4_publish(14, LRED, fl=LOC)
    A.label('L_c3')
    stamp(4)
    tab_to(N2, rel=True)
    def line_reduce_store(vgaddr, offs, base, fl, GR=GR, **kw):
        n = len(offs)
        gather(GR, n, vgaddr, offs, 5, **kw)
        if n > 1 and r1st == 3:
            stamp(7)
            A(f's_sub_u32 s4, {POLL_LIMIT}, s10\ns_mul_i32 s4, s4, 100\ns_add_u32 s{SB+8}, s{SB+9}, s4')
        if n > 1: sumn(GR, n, GR)
        red('v_add_f32', [GR, GR + 1, GR + 2, GR + 3], [R8, 'p16', 'p32'], [8, 9, 10, 11])
        rnd2(GR, GR + 1, 8); rnd2(GR + 2, GR + 3, 9)
        embed_bf(8, [GR, GR + 1, GR + 2, GR + 3])
        A(f's_mov_b32 s7, {base}\ns_mov_b64 exec, 0xff')
        wsstore(8, 17, 's7', fl)
        A('s_mov_b64 exec, -1')
    addr(17, [(0, 6, 16)], [('s2', 7, 1, 16384), T_(G_, 2048), ('s2', 3, 4, 128)])
    A('s_cmp_lg_u32 s3, 2\ns_cbranch_scc1 L_r2')
    addr(4, [(3, 3, 32 * SL), (0, 3, 16)], [T_(G_, SL), ('s2', 5, 2, 8 * SL), ('s2', 7, 1, 512), ('s2', 3, 2, 128)], QP, tmp=5)
    line_reduce_store(4, [0], Q2, 'sc1', kind=1, net=True)
    A.label('L_r2')
    tab_to(NB, C_T2)
    if TQ < 99: lds_spin(C_T2, TGC, 6, sleep=2)
    sexpr('s4', [T_(G_, 4096)], Q2)
    A('v_add_u32 v4, s4, v19')
    stamp(5)
    gather(GR, 1, 4, [0], 5, kind=1, net=True)
    A(f'v_perm_b32 v4, v{GR+1}, v{GR}, s13\nv_perm_b32 v5, v{GR+3}, v{GR+2}, s13')
    A('v_lshrrev_b32 v6, 1, v19')
    A(f'ds_write_b64 v6, v[4:5] offset:{LQ}')
    lds_inc(C_Q, 8)
    stamp(6)
    tab_to(NB)
    lds_inc(C_TB, 4, rtn=True)
    A('s_cmp_lg_u32 s4, 3\ns_cbranch_scc1 L_c3d')
    A(f's_mov_b64 exec, {(1 << (NB//4)) - 1}')
    A('v_lshlrev_b32 v4, 8, v0')
    for i in range(16): A(f'ds_read_b128 {v(40+4*i,4)}, v4 offset:{LTP+16*i}')
    A(f's_mul_i32 s4, s2, {NB*4}\ns_add_u32 s4, s4, {TB}\nv_add_u32 v12, s4, v18')
    A('s_waitcnt lgkmcnt(0)')
    for k in range(4):
        A(f'v_add_f32 v{4+k}, v{40+16*k}, v{41+16*k}')
        for i in range(2, 16): A(f'v_add_f32 v{4+k}, v{4+k}, v{40+16*k+i}')
    embed(8, [4, 5, 6, 7])
    wsstore(8, 12)
    A('s_mov_b64 exec, -1')
    A.label('L_c3d')
    if not r1st: stamp(7)
    W2R = 40; BF = 72; AC2 = 40
    if cpf:
        A('s_cmp_lg_u32 s3, 2\ns_cbranch_scc1 L_cpf')
        A('s_getpc_b64 s[8:9]')
        A.label('L_pc')
        A(f's_lshr_b32 s4, s2, 3\ns_and_b32 s4, s4, 15\ns_lshl_b32 s4, s4, 10\ns_min_u32 s4, s4, L_codeend-L_pc-1024\nv_add_u32 v4, s4, v18')
        A('global_load_dwordx4 v[144:147], v4, s[8:9]')
        A.label('L_cpf')
    HH = lambda m: [T_(G_, 4 * m), ('s2', 3, 2, m)]
    CC = ('s2', 5, 3); GG = ('s2', 1, 2)
    HL = lambda m: [('s2', 0, 1, 4 * m), ('s2', 3, 2, m)]
    B_ = ('s2', OB, 1)
    srd(52, 24, 8 << 20)
    addr(33, [HI + (8 * 2048,), LOf + (16,)], HH(128 * 2048) + [T_(CW, 32 * 2048), T_(CC, 256)], tmp=4)
    addr(27, [(0, 6, 16)], [T_(G_, 32 * SL), T_(C_, SL), T_(CW, 1024)], OP, tmp=4)
    addr(28, [(5, 1, 32)], [T_(CW, 64)], tmp=4)
    addr(31, [(1, 5, SL), (0, 1, 16)], [T_(G_, 32 * SL), T_(C_, 128), T_(CW, 32)], OP, tmp=4)
    addr(29, [(2, 1, 512 * OST), HI + (OST,), (0, 1, 16)], [T_(GG, 128 * OST)] + HL(16 * OST) + [T_(CW, 4 * OST)], O2, tmp=4)
    addr(17, [(0, 3, 16), (5, 1, 8)], [T_(G_, 128 * OST), T_(C_, 4 * OST), T_(CW, OST)], O2, tmp=4)
    sexpr('s4', HH(8 * SL) + [T_(CC, SL)], AP)
    A('v_add_u32 v30, s4, v18')
    sexpr('s4', [T_(CT_, 128 * SL), T_(CG, 8 * SL), T_(RG8, SL)], MODR)
    A('v_add_u32 v32, s4, v18')
    addr(36, [(0, 3, 8), (4, 1, 4), (5, 1, 2)], [T_(B_, 2048), T_(C_, 64)], tmp=4)
    addr(26, [(5, 1, 16), (0, 2, 32)], [T_(B_, 4096), T_(C_, 128)], tmp=4)
    addr(37, [(5, 1, 16), (0, 5, 128)], [T_(B_, 4096)], tmp=4)
    addr(38, [(3, 3, 8 * SL), (0, 3, 16)], [T_(CC, SL), T_(B_, 512), ('s2', 3, 2, 128)], AP, tmp=4)
    addr(34, [(3, 3, SL), (0, 3, 16)], [T_(CC, 8 * SL), T_(B_, 512), ('s2', 3, 2, 128)], MODR, tmp=4)
    GA = 20; SBr = 21; Ur = 22; GB = 23; XO = 24; B2r = 25; CU = 48
    A('s_cmp_lg_u32 s3, 1\ns_cbranch_scc1 L_c4')
    A(f'global_load_ushort v{XO}, v36, s[16:17]')
    A(f'v_mov_b32 v7, 0\nglobal_load_ushort v{B2r}, v7, s[34:35]')
    A.label('L_c4')
    def sums_publish(r, base):
        tred(32, [(r, r + 3), (r + 1, r + 4), (r + 2, r + 5)])
        A(f'v_mov_b32 v{r+3}, s60')
        red('v_add_f32', [r, r + 1, r + 2], [X1_, X2_, HM])
        for j in range(3): A(f'v_add_f32_dpp v{r+j}, v{r+j}, v{r+j} row_bcast:15 row_mask:0xa bank_mask:0xf')
        A(f's_mov_b32 s7, {base}\ns_mov_b32 exec_lo, 0xf0000\ns_mov_b32 exec_hi, 0xf0000')
        locstore(r, 26, 's7')
        A('s_mov_b64 exec, -1')
    A('s_cmp_lg_u32 s3, 3\ns_cbranch_scc1 L_c5')
    lds_spin(C_ST, 8, 4, sleep=4)
    A(f'v_lshlrev_b32 v4, 3, v0\nds_read_b64 v[8:9], v4 offset:{LST}')
    A(f's_mov_b32 s7, {hx(f2u(LOG2E))}')
    A('s_waitcnt lgkmcnt(0)')
    A('v_mov_b32 v4, v8\nv_mov_b32 v39, v8')
    red('v_max_f32', [4], [R8, 'p16', 'p32'], [6])
    A('v_sub_f32 v5, v8, v4\nv_mul_f32 v5, s7, v5\nv_exp_f32 v5, v5\nv_mul_f32 v5, v5, v9')
    red('v_add_f32', [5], [R8, 'p16', 'p32'], [6])
    A('s_getreg_b32 s67, hwreg(HW_REG_XCC_ID, 0, 4)')
    A(f'v_mov_b32 v6, s67\nv_mov_b32 v7, s60')
    addr(12, [(0, 6, 16)], [T_(G_, 4096), T_(C_, 128)], ST)
    A('s_mov_b64 exec, 0xff')
    wsstore(4, 12, fl=LOC)
    A('s_mov_b64 exec, -1')
    addr(12, [(0, 6, 16)], [T_(G_, 4096)], ST)
    lds_spin(C_V, 8, 8, sleep=4)
    gather(GR, 4, 12, [1024 * i for i in range(4)], 8, full=True, net=True)
    for i in range(4): A(f'v_xor_b32 v{GR+4*i+2}, s67, v{GR+4*i+2}')
    A(f'v_or3_b32 v4, v{GR+2}, v{GR+6}, v{GR+10}\nv_or_b32 v4, v4, v{GR+14}\nv_cmp_ne_u32 vcc, 0, v4')
    A('s_or_b32 s4, vcc_lo, vcc_hi\nv_mov_b32 v4, s4\nv_mov_b32 v5, 0')
    A(f'ds_write_b32 v5, v4 offset:{C_H}')
    A(f'v_max3_f32 v4, v{GR}, v{GR+4}, v{GR+8}\nv_max_f32 v4, v4, v{GR+12}')
    red('v_max_f32', [4], [R8, 'p16', 'p32'], [6])
    for i in range(4): A(f'v_sub_f32 v{8+i}, v{GR+4*i}, v4')
    for i in range(4): A(f'v_mul_f32 v{8+i}, s7, v{8+i}')
    for i in range(4): A(f'v_exp_f32 v{8+i}, v{8+i}')
    A(f'v_mul_f32 v5, v8, v{GR+1}')
    for i in range(1, 4): A(f'v_fmac_f32 v5, v{8+i}, v{GR+4*i+1}')
    red('v_add_f32', [5], [R8, 'p16', 'p32'], [6])
    A('v_rcp_f32 v5, v5\nv_sub_f32 v6, v39, v4\nv_mul_f32 v6, s7, v6\nv_exp_f32 v6, v6\nv_mul_f32 v6, v6, v5')
    addr(7, [(0, 3, 32), (3, 3, 4)], tmp=8)
    A(f'ds_write_b32 v7, v6 offset:{LF}')
    lds_inc(C_F, 8)
    A.label('L_c5')
    def preload(n, lab):
        A(f's_and_b32 s4, s2, {7 ^ (1 << OB)}\ns_cbranch_scc1 {lab}')
        A(f's_sub_u32 s4, s3, 1\ns_cmp_lt_u32 s4, 2\ns_cbranch_scc1 {lab}')
        A(f's_and_b32 s4, s3, 1\ns_mul_i32 s4, s4, {NB*512}\nv_add_u32 v4, s4, v18\nv_add_u32 v6, {TB}, v4')
        spin(GR, 6, [1024 * i for i in range(NB // 2)], 5)
        for i in range(NB // 2): A(f'ds_write_b128 v4, {v(GR+4*i,4)} offset:{LT+1024*i}')
        lds_inc(C_PL, 8); lds_inc(C_PL, 8)
        A.label(lab)
    if PLD == 2:
        lds_spin(C_V, 8, 4, sleep=4)
        preload(2, 'L_pl2')
    if not r1st: stamp(8)
    lds_spin(C_XS, 8, 4, sleep=2)
    if PT1 == 1: A('s_cmp_lg_u32 s3, 2\ns_cbranch_scc1 L_pre1')
    if PT1 < 2: wsload(136, 31, 0)
    if PT1 >= 5:
        m_ = {5: 0x01010101, 6: 0x00010001, 7: 0x11111111}[PT1]
        A(f's_cmp_lg_u32 s3, 2\ns_cbranch_scc1 L_pre1\ns_mov_b32 exec_lo, {m_}\ns_mov_b32 exec_hi, {m_ | 0x40000000}')
        wsload(136, 31, 0)
        A('s_mov_b64 exec, -1')
    if PT1 in (3, 4): A(f'buffer_load_dwordx4 v[136:139], v27, s[44:47], 0 offen {"nt" if PT1 == 3 else "sc1"}')
    A.label('L_pre1')
    A('s_cmp_lg_u32 s3, 1\ns_cbranch_scc1 L_pre2')
    A(f's_and_b32 s4, s2, {7 ^ (1 << OB)}\ns_cbranch_scc1 L_pre2')
    wsload(140, 37, XS); wsload(144, 37, CS)
    A.label('L_pre2')
    def mr_pub():
        A('s_cmp_lg_u32 s3, 0\ns_cbranch_scc1 L_pre3')
        lds_spin(C_TB, 4, 4)
        red4_publish(32, LRED2, False)
        A.label('L_pre3')
    if MRP == 0: mr_pub()
    if O1:
        addr(39, [(0, 1, 16), (5, 1, 8)], [T_(CW, 32)], tmp=4)
        addr(17, [(0, 6, 16)], [T_(G_, 4096), T_(C_, 128)], O2)
    lds_spin(C_WO, WOC, 4, sleep=2)
    tile_loads(W2R, 33, 's[52:55]', 2048)
    if MRP == 1: mr_pub()
    addr(2, [(5, 1, 512), (1, 4, 16)], [T_(CW, 1024)], LV, tmp=1)
    A(f'v_and_b32 v1, 1, v0\nv_mul_u32_u24 v1, 384, v1\nv_xor_b32 v2, v2, v1\nv_add_u32 v1, {4*NL*1024}, v2')
    lds_spin(C_F, 1, 12)
    A(f'ds_read_b32 v35, v13 offset:{C_H}')
    A(f'ds_read_b128 v[4:7], v28 offset:{LF}\nds_read_b128 v[8:11], v28 offset:{LF+16}')
    A('s_waitcnt lgkmcnt(0)\nv_readfirstlane_b32 s67, v35')
    A('s_barrier')
    stamp(9)
    for w in range(8): A(f'ds_read_b128 {v(GR+4*w,4)}, v{2 if w < 4 else 1} offset:{NL*1024*(w%4)}')
    for w in range(8):
        A(f's_waitcnt lgkmcnt({7-w})')
        sel = 'op_sel:[0,1,0] op_sel_hi:[1,1,1]' if w & 1 else 'op_sel:[0,0,0] op_sel_hi:[1,0,1]'
        for k in (0, 2):
            if w == 0: A(f'v_pk_mul_f32 {v(12+k,2)}, {v(GR+k,2)}, v[4:5] op_sel_hi:[1,0]')
            else: A(f'v_pk_fma_f32 {v(12+k,2)}, {v(GR+4*w+k,2)}, {v(4+(w&~1),2)}, {v(12+k,2)} {sel}')
    embed(4, [12, 13, 14, 15], False)
    locstore(4, 27)
    A('v_mov_b32 v9, s60\nv_mov_b32 v10, 0\nv_mov_b32 v11, 1')
    spin(136, 31, [0], 12, net=True, sleep=OS)
    if r1st == 3: stamp(7)
    tred(32, [(136, 138), (137, 139)])
    tred(16, [(136, 137)])
    red('v_add_f32', [136], ['row_ror:2', 'row_ror:4', R8])
    A('v_mov_b32 v137, v136\nv_permlane16_swap_b32 v136, v137\nv_cvt_pk_bf16_f32 v8, v136, v137')
    A(f's_mov_b32 exec_lo, {255 if O2F else 3}\ns_mov_b32 exec_hi, {255 if O2F else 3}')
    if O1:
        A(f'ds_write_b64 v39, v[8:9] offset:{LXS}\ns_mov_b64 exec, 1\nds_add_rtn_u32 v11, v10, v11 offset:{C_O}\ns_mov_b64 exec, 0xff')
        A(f'ds_read_b128 v[4:7], v18 offset:{LXS}\ns_waitcnt lgkmcnt(0)\nv_readfirstlane_b32 s4, v11\ns_cmp_lg_u32 s4, 3\ns_cbranch_scc1 L_o1')
        A('buffer_store_dwordx4 v[4:7], v17, s[44:47], 0 offen sc1')
        A.label('L_o1')
    elif not abl & 32: A('buffer_store_dwordx2 v[8:9], v17, s[44:47], 0 offen sc1')
    A('s_mov_b64 exec, -1')
    stamp(10)
    if MRP == 2: mr_pub()
    perm_all(BF, W2R)
    spin(GR, 29, [0], 12, full=2, sleep=GS)
    stamp(11)
    for k in range(4): A(f'v_mov_b32_dpp v{4+k}, v{GR+2*(k&1)} quad_perm:{"[0,0,2,2]" if k < 2 else "[1,1,3,3]"} {MK}')
    for n in range(8): mfma(AC2 + 4 * n, 4, BF + 4 * n, True)
    select_out(8, AC2)
    A(f'ds_write_b128 v16, v[8:11] offset:{LRED}')
    A('s_waitcnt lgkmcnt(0)')
    A('s_barrier')
    A('s_cmp_lg_u32 s3, 0\ns_cbranch_scc1 L_c6')
    red4_publish(30, LRED, False)
    A.label('L_c6')
    if PLD == 1: preload(2, 'L_pl1')
    A(f's_and_b32 s4, s2, {7 ^ (1 << OB)}\ns_cbranch_scc1 L_c7')
    A('s_cmp_eq_u32 s3, 1\ns_cbranch_scc1 L_fin')
    A('s_cmp_lg_u32 s3, 2\ns_cbranch_scc1 L_c7')
    def sums_get(base, d0, mid=None):
        spin(GR, 37, [base], 12, full=1, mid=mid)
        red('v_add_f32', [GR, GR + 1, GR + 2], [X1_, X2_, HM, RM, 'p16'], [GR + 4, GR + 5, GR + 6])
        for j in range(3): A(f'v_mul_f32 v{d0+j}, {hx(f2u(1.0/1024))}, v{GR+j}\nv_mul_f32 v{d0+3+j}, {hx(f2u(1.0/1024))}, v{GR+j}')
        for j in range(3): A(f'v_permlane32_swap_b32 v{d0+j}, v{d0+3+j}')
    spin(GR, 34, [m * 64 * SL for m in range(4)], 5)
    tred(32, [(GR + 4 * m + 2 * j, GR + 4 * m + 2 * j + 1) for m in range(4) for j in range(2)])
    tred(16, [(GR + 4 * m, GR + 4 * m + 2) for m in range(4)])
    for m in range(4): A(f'v_add_f32_dpp v{GA+m}, v{GR+4*m}, v{GR+4*m} {R8} {MK}')
    rnd2(GA, SBr, 4); rnd2(Ur, GB, 5)
    A(f'v_add_f32 v{Ur}, 1.0, v{Ur}'); rnd1(Ur)
    A(f'ds_write_b128 v18, {v(GA,4)} offset:{LRED2}')
    lds_inc(C_MR, 12)
    A(f'v_mov_b32 v4, v{Ur}\nv_mul_f32 v5, v{Ur}, v{Ur}\nv_mul_f32 v6, v{Ur}, v{SBr}\nv_mov_b32 v7, v{SBr}\nv_mul_f32 v8, v{SBr}, v{SBr}\nv_mov_b32 v9, 0')
    sums_publish(4, CS)
    sums_get(CS, CU)
    A(f'v_mov_b32 v4, 0\ns_mov_b64 exec, 1\nds_write_b128 v4, {v(CU,4)} offset:{LRED2+1024}\nds_write_b32 v4, v{CU+4} offset:{LRED2+1040}\ns_mov_b64 exec, -1')
    lds_spin(C_PL, 3, 12)
    lds_inc(C_MR, 12)
    A.label('L_c7')
    stamp(12)
    stamp_flush(13)
    A('s_endpgm')
    A.label('L_fin')
    A(f'v_lshlrev_b32 v{XO}, 16, v{XO}\nv_lshlrev_b32 v{B2r}, 16, v{B2r}')
    lds_spin(C_MR, 1, 12, sleep=0)
    A(f'ds_read_b128 {v(GA,4)}, v18 offset:{LRED2}')
    spin(GR, 38, [64 * SL * i for i in range(4)], 12)
    stamp(12)
    for k in range(4): A(f'v_add_f32 v{4+k}, v{GR+k}, v{GR+4+k}\nv_add_f32 v{8+k}, v{GR+8+k}, v{GR+12+k}')
    for k in range(4): A(f'v_add_f32 v{4+k}, v{4+k}, v{8+k}')
    tred(32, [(4, 5), (6, 7)]); tred(16, [(4, 6)]); red('v_add_f32', [4], [R8])
    if FS: A(f's_waitcnt lgkmcnt(0)\nv_fmac_f32 v{XO}, v4, v{GA}')
    else:
        rnd1(4)
        A(f's_waitcnt lgkmcnt(0)\nv_mul_f32 v4, v4, v{GA}'); rnd1(4)
        A(f'v_add_f32 v{XO}, v{XO}, v4'); rnd1(XO)
    A(f'v_mov_b32 v4, v{XO}\nv_mul_f32 v5, v{XO}, v{XO}\nv_mul_f32 v6, v{XO}, v{Ur}\nv_mul_f32 v7, v6, v6\nv_mul_f32 v8, v6, v{Ur}\nv_mul_f32 v9, v6, v{SBr}')
    sums_publish(4, XS)
    def consts():
        lds_spin(C_MR, 2, 12, sleep=0)
        A(f's_mov_b32 s10, {POLL_LIMIT}')
        A(f'ds_read_b128 {v(CU,4)}, v13 offset:{LRED2+1024}\nds_read_b32 v{CU+4}, v13 offset:{LRED2+1040}')
    sums_get(XS, 40, consts)
    A('s_waitcnt lgkmcnt(0)')
    stamp(13)
    if FS:
        A(f'v_fma_f32 v5, -v40, v40, v41\nv_fma_f32 v42, -v40, v{CU}, v42\nv_max_f32 v5, 0, v5\nv_mul_f32 v10, v40, v{CU+1}')
        A(f'v_add_f32 v5, {hx(f2u(1e-5))}, v5\nv_fma_f32 v45, -v40, v{CU+2}, v45\nv_rsq_f32 v5, v5\nv_fma_f32 v10, -2.0, v44, v10')
        A(f'v_sub_f32 v12, v{XO}, v40\nv_fma_f32 v43, v40, v10, v43\nv_add_f32 v45, v45, v45\nv_mul_f32 v12, v12, v{Ur}')
        A(f'v_fma_f32 v8, v5, v42, v{CU+3}\nv_fma_f32 v43, v43, v5, v45\nv_fma_f32 v12, v12, v5, v{SBr}\nv_fma_f32 v9, v43, v5, v{CU+4}')
        A(f'v_fma_f32 v9, -v8, v8, v9\nv_sub_f32 v12, v12, v8\nv_max_f32 v9, 0, v9\nv_add_f32 v9, {hx(f2u(1e-5))}, v9\nv_rsq_f32 v9, v9')
        A(f'v_fmac_f32 v{XO}, v{B2r}, v{GB}')
        A('v_mul_f32 v12, v12, v9'); rnd1(12)
    else:
        A('v_mov_b32 v4, v40\nv_fma_f32 v5, -v40, v40, v41\nv_max_f32 v5, 0, v5')
        sigma(4)
        A(f'v_fma_f32 v42, -v4, v{CU}, v42')
        A(f'v_fma_f32 v45, -v4, v{CU+2}, v45')
        A(f'v_mul_f32 v10, v4, v{CU+1}\nv_fma_f32 v10, -2.0, v44, v10\nv_fma_f32 v43, v4, v10, v43')
        A(f'v_sub_f32 v12, v{XO}, v4'); rnd1(12)
        A(f'v_fma_f32 v8, v5, v42, v{CU+3}')
        A(f'v_mul_f32 v43, v43, v5\nv_fma_f32 v43, 2.0, v45, v43\nv_fma_f32 v9, v43, v5, v{CU+4}')
        A('v_mul_f32 v12, v12, v5'); rnd1(12)
        A('v_fma_f32 v9, -v8, v8, v9\nv_max_f32 v9, 0, v9')
        A(f'v_mul_f32 v12, v12, v{Ur}'); rnd1(12)
        sigma(8)
        A(f'v_add_f32 v12, v12, v{SBr}'); rnd1(12)
        A('v_sub_f32 v12, v12, v8'); rnd1(12)
        A('v_mul_f32 v12, v12, v9'); rnd1(12)
    A(f'v_bfe_u32 v13, v12, 16, 15\nv_subrev_u32 v13, {E0*128}, v13\nv_lshrrev_b32 v14, 31, v12')
    A(f'v_cmp_lt_u32 vcc, {NB*128-1 if not force_fb else 128*17}, v13')
    A(f'v_min_u32 v13, {NB*128-1}, v13\nv_mul_u32_u24 v14, {NB*128}, v14\nv_add_lshl_u32 v13, v13, v14, 2')
    A(f'ds_read_b32 v15, v13 offset:{LT}')
    if not abl: A('s_cbranch_vccnz L_fb0')
    A.label('L_nofb')
    A('s_waitcnt lgkmcnt(0)')
    if FS: A(f'v_fma_f32 v15, v15, v{GB}, v{XO}')
    else:
        rnd1(15)
        A(f'v_add_f32 v15, v15, v{B2r}'); rnd1(15)
        A(f'v_mul_f32 v15, v15, v{GB}'); rnd1(15)
        A(f'v_add_f32 v15, v15, v{XO}')
    A('v_cvt_pk_bf16_f32 v15, v15, v15')
    A('s_mov_b32 exec_lo, 0x00ff00ff\ns_mov_b32 exec_hi, 0x00ff00ff')
    A('global_store_short v36, v15, s[40:41]')
    A('s_cmp_lg_u32 s2, 0\ns_cbranch_scc1 L_f2')
    A('v_mov_b32 v4, 0\nv_mov_b32 v5, s60\ns_mov_b64 exec, 1')
    A('buffer_store_dword v5, v4, s[44:47], 0 offen' + (' sc1' if GSC else ''))
    if enc >= 0:
        if enc == 99: A('s_memrealtime s[74:75]\ns_waitcnt lgkmcnt(0)')
        if enc == 98: A('s_mov_b32 s74, s70')
        A(f's_sub_u32 s5, s74, s70\ns_add_u32 s5, s5, {hold*100}')
        A.label('L_hold')
        A(f's_memrealtime s[72:73]\ns_waitcnt lgkmcnt(0)\ns_sub_u32 s4, s72, s70\ns_cmp_lt_u32 s4, s5\ns_cbranch_scc1 L_hold')
    elif hold:
        A.label('L_hold')
        A(f's_memrealtime s[72:73]\ns_waitcnt lgkmcnt(0)\ns_sub_u32 s4, s72, s70\ns_cmp_lt_u32 s4, {hold*100}\ns_cbranch_scc1 L_hold')
    A.label('L_f2')
    if stamps: A(f's_memrealtime s[70:71]\ns_waitcnt lgkmcnt(0)\ns_mov_b32 s{SB+1}, s70')
    stamp_flush(14)
    A.label('L_end')
    A('s_endpgm')
    for L1, L2, r, vaddr, soff in slow:
        A.label(L1)
        wsstore(r, vaddr, soff)
        A(f's_branch {L2}')
    for X, Y, E, net in cold:
        A.label(X)
        A(f's_cmp_eq_u32 s10, 0\ns_cbranch_scc1 {X}e')
        if net: A('buffer_wbl2 sc1\ns_waitcnt vmcnt(0)\nbuffer_inv sc1\ns_waitcnt vmcnt(0)')
        A(f's_branch {Y}')
        A.label(X + 'e')
        A(f's_waitcnt vmcnt(0)\ns_branch {E}')
    A.label('L_fb0')
    A('s_mov_b64 s[66:67], vcc')
    A('s_waitcnt lgkmcnt(0)')
    tab_consts()
    A.label('L_fb')
    A('s_ff1_i32_b64 s4, s[66:67]')
    A('v_readlane_b32 s64, v12, s4')
    A('s_mov_b32 s6, 0\nv_mov_b32 v13, 0')
    A('s_mov_b32 s65, s64')
    A.label('L_fb2')
    tab_load('s6'); tab_unpack(); tab_eval()
    A(f'v_add_f32 v13, v13, v{TA}')
    A('s_add_u32 s6, s6, 1\ns_cmp_lt_u32 s6, 4\ns_cbranch_scc1 L_fb2')
    red('v_add_f32', [13], [X1_, X2_, HM, RM, 'p16', 'p32'], [14])
    A('v_cmp_eq_u32 vcc, s64, v12')
    A('v_cndmask_b32 v15, v15, v13, vcc')
    A('s_andn2_b64 s[66:67], s[66:67], vcc')
    A('s_cbranch_scc1 L_fb')
    A('s_branch L_nofb')
    A.label('L_tab')
    A('s_cmp_ge_u32 s66, s5\ns_cbranch_scc1 L_tabx')
    A('s_setprio 0')
    A.label('L_tab1')
    A('s_mov_b32 s65, s64\nv_mov_b32 v5, s63\nds_read_b32 v5, v5\ns_waitcnt lgkmcnt(0)\nv_readfirstlane_b32 s4, v5')
    A(f's_cmp_ge_u32 s4, {TGC}\ns_cbranch_scc1 L_tabe')
    if notab & 1: A('s_sleep 9')
    else: tab_eval()
    A('v_lshrrev_b32 v4, 2, v0\nv_add_u32 v4, s6, v4')
    red('v_add_f32', [TA], [X1_, X2_, HM, RM])
    A('s_mov_b32 exec_lo, 0x00010001\ns_mov_b32 exec_hi, 0x00010001')
    A(f'ds_write_b32 v4, v{TA} offset:{LTP}')
    A('s_mov_b64 exec, -1')
    A('s_add_u32 s6, s6, 64\ns_add_u32 s64, s64, 0x10000\ns_add_u32 s66, s66, 1\ns_cmp_lt_u32 s66, s5')
    A('s_cbranch_scc1 L_tab1')
    A.label('L_tabe')
    A('s_setprio 3')
    A.label('L_tabx')
    A('s_setpc_b64 s[68:69]')
    A.label('L_codeend')
    A.raw('.section .rodata,"a"'); A.raw('.p2align 6'); A.raw(f'.amdhsa_kernel {KN}')
    A.raw('  .amdhsa_next_free_vgpr 168'); A.raw('  .amdhsa_next_free_sgpr 102'); A.raw('  .amdhsa_accum_offset 168')
    A.raw('  .amdhsa_group_segment_fixed_size 0'); A.raw('  .amdhsa_kernarg_size 120'); A.raw('  .amdhsa_user_sgpr_count 2')
    A.raw('  .amdhsa_user_sgpr_kernarg_segment_ptr 1'); A.raw('  .amdhsa_system_sgpr_workgroup_id_x 1'); A.raw('.end_amdhsa_kernel')
    return A.text()

if __name__ == '__main__':
    open('k17.s', 'w').write(gen())
    open('k17_st.s', 'w').write(gen(stamps=1))
    open('k17_fb.s', 'w').write(gen(force_fb=1))
```
